```python
import torch

def _softmax(x, axis=-1):
    return torch.softmax(x, dim=axis)
def _gelu(x):
    return torch.nn.functional.gelu(x, approximate="tanh")
def _silu(x):
    return torch.nn.functional.silu(x)
def _sigmoid(x):
    return torch.sigmoid(x)
def _layernorm(x, axis=-1, eps=1e-5):
    m = x.mean(dim=axis, keepdim=True)
    v = x.var(dim=axis, keepdim=True, unbiased=False)
    return (x - m) / torch.sqrt(v + eps)
def _scatter_add(tgt, idx, src, axis=0):
    return tgt.clone().index_add_(axis, idx, src)
def _segment_sum(src, seg, n):
    out = torch.zeros((n,) + src.shape[1:], dtype=src.dtype)
    return out.index_add_(0, seg, src)
def _pad(x, pw):
    flat = tuple(v for pair in reversed(pw) for v in pair)
    return torch.nn.functional.pad(x, flat)

kernel_name = 'standalone__mixer_channel_mlp__prompt'

def setup_inputs():

    _w = (lambda a: (lambda t: t.to(torch.bfloat16) if t.is_floating_point() else t)(torch.as_tensor(a)))
    B, S, D, F = 1, 2048, 576, 4608
    return {
        "x": _w((lambda *s: torch.randn(*s, dtype=torch.bfloat16) * 0.05)(B, S, D)),
        "w1": _w((lambda *s: torch.randn(*s, dtype=torch.bfloat16) * 0.8)(D, F) * (D ** -0.5)),
        "b1": _w((lambda *s: torch.randn(*s, dtype=torch.bfloat16) * 0.4)(F)),
        "w2": _w((lambda *s: torch.randn(*s, dtype=torch.bfloat16) * 0.05)(F, D) * (F ** -0.5)),
        "b2": _w((lambda *s: torch.randn(*s, dtype=torch.bfloat16) * 0.05)(D)),
    }

def reference(x, w1, b1, w2, b2):
    y = _layernorm(x, axis=-1)
    h = _gelu(torch.einsum("bsd,df->bsf", y, w1) + b1)
    return torch.einsum("bsf,fd->bsd", h, w2) + b2
```

```python
HEADER_COMMENT = """; Kernarg layout for this problem (64 bytes, ptrs only, base s[0:1]):
"""

class Asm:
    def __init__(self):
        self.lines = []
        self.nlabel = 0
    def __call__(self, s):
        for l in s.strip("\n").split("\n"):
            self.lines.append("    " + l.strip())
    def label(self, name):
        self.lines.append(name + ":")
    def newlabel(self, prefix="L"):
        self.nlabel += 1
        return "%s_%d" % (prefix, self.nlabel)
    def comment(self, s):
        self.lines.append("    ; " + s)
    def text(self):
        return "\n".join(self.lines) + "\n"

def kernel_begin(name):
    return f""".globl {name}
.p2align 8
.type {name},@function
{name}:
"""

def kernel_desc(name, vgpr, sgpr, accum):
    return f""".section .rodata,"a"
.p2align 6
.amdhsa_kernel {name}
  .amdhsa_next_free_vgpr {vgpr}
  .amdhsa_next_free_sgpr {sgpr}
  .amdhsa_accum_offset {accum}
  .amdhsa_group_segment_fixed_size 0
  .amdhsa_kernarg_size 64
  .amdhsa_user_sgpr_count 2
  .amdhsa_user_sgpr_kernarg_segment_ptr 1
  .amdhsa_system_sgpr_workgroup_id_x 1
.end_amdhsa_kernel
"""

def file_text(launch_lines, kernels):
    s = HEADER_COMMENT
    for l in launch_lines:
        s += l + "\n"
    s += '.amdgcn_target "amdgcn-amd-amdhsa--gfx950"\n.text\n'
    for (name, body, vgpr, sgpr, accum) in kernels:
        s += kernel_begin(name) + body + "    s_endpgm\n"
    for (name, body, vgpr, sgpr, accum) in kernels:
        s += kernel_desc(name, vgpr, sgpr, accum)
    return s
```

```python
import copy, re

def V(n, cnt=1):
    return ["v%d" % i for i in range(n, n + cnt)]
def S(n, cnt=1):
    return ["s%d" % i for i in range(n, n + cnt)]
def vr(n, cnt):
    return "v%d" % n if cnt == 1 else "v[%d:%d]" % (n, n + cnt - 1)
def sr(n, cnt):
    return "s%d" % n if cnt == 1 else "s[%d:%d]" % (n, n + cnt - 1)

VALU_KINDS = ("valu", "trans", "dot")

class Em:
    def __init__(self):
        self.out = []
        self.pos = 0
        self.lastw = {}
        self.mfma_c_read = {}
        self.store_data = {}
        self.ds = []
        self.vm = []
        self.dsseq = 0
        self.vmseq = 0
        self.nlabel = 0
        self.stats = {}
    def fork(self):
        e = copy.deepcopy(self)
        e.out = []
        return e
    def raw(self, text):
        self.out.append("    " + text)
    def label(self, name):
        self.out.append(name + ":")
    def comment(self, t):
        self.out.append("    ; " + t)
    def nop(self, n):
        while n > 0:
            k = min(n, 16)
            self.raw("s_nop %d" % (k - 1))
            self.pos += k
            n -= k
            self.stats["nop"] = self.stats.get("nop", 0) + 1
    def _wait(self, vm=None, lgkm=None):
        parts = []
        if vm is not None:
            parts.append("vmcnt(%d)" % min(vm, 63))
            self.vm = self.vm[len(self.vm) - vm:] if vm > 0 else []
        if lgkm is not None:
            parts.append("lgkmcnt(%d)" % min(lgkm, 15))
            n = min(lgkm, 15)
            self.ds = self.ds[len(self.ds) - n:] if n > 0 else []
        self.raw("s_waitcnt " + " ".join(parts))
        self.pos += 1
        self.stats["wait"] = self.stats.get("wait", 0) + 1
    def wait_vm_token(self, tok):
        idx = [i for i, (s, r) in enumerate(self.vm) if s <= tok]
        if not idx:
            return
        n = len(self.vm) - 1 - idx[-1]
        self._wait(vm=n)
    def wait_ds_token(self, tok):
        idx = [i for i, (s, r) in enumerate(self.ds) if s <= tok]
        if not idx:
            return
        n = len(self.ds) - 1 - idx[-1]
        self._wait(lgkm=n)
    def wait_all(self, vm=True, lgkm=True):
        self._wait(vm=0 if vm else None, lgkm=0 if lgkm else None)
    def _autowait(self, regs):
        regs = set(regs)
        nv = None; nl = None
        for i, (s, r) in enumerate(self.vm):
            if r & regs:
                nv = len(self.vm) - 1 - i
        for i, (s, r) in enumerate(self.ds):
            if r & regs:
                nl = len(self.ds) - 1 - i
        if nv is not None or nl is not None:
            self._wait(vm=nv, lgkm=nl)
    def _need(self, kind, rd, wr, opc, csrc=(), dexact=None):
        need = 0
        def dist(p):
            return self.pos - p - 1
        for r in rd:
            lw = self.lastw.get(r)
            if lw is None: continue
            pk, pp, pex = lw
            req = 0
            if r[0] == "v" and r != "vcc":
                if pk in VALU_KINDS and kind == "mfma": req = max(req, 2)
                if pk == "mfma":
                    if kind == "mfma":
                        if r in csrc:
                            req = max(req, 0 if pex == dexact else 6)
                        else:
                            req = max(req, 8)
                    else:
                        req = max(req, 8)
                if pk == "trans" and kind != "trans": req = max(req, 1)
                if pk == "dot":
                    if kind == "dot" and pex == opc and r in csrc: pass
                    else: req = max(req, 3)
                if pk in VALU_KINDS and kind == "readlane": req = max(req, 1)
                if pk in VALU_KINDS and kind in ("permlane", "dpp"): req = max(req, 2)
                if pk in ("permlane", "dpp") and kind == "mfma": req = max(req, 2)
                if pk in ("permlane", "dpp") and kind in ("permlane", "dpp"): req = max(req, 2)
            else:
                if pk in VALU_KINDS + ("readlane",):
                    if kind in VALU_KINDS + ("permlane", "dpp", "mfma"): req = max(req, 2)
                    if kind in ("vload", "vstore", "dma"): req = max(req, 5)
                    if kind == "readlane": req = max(req, 4)
                    if kind == "salu": req = max(req, 2)
                if r == "m0" and pk == "salu" and kind == "dma": req = max(req, 1)
            need = max(need, req - dist(pp))
        for r in wr:
            lw = self.lastw.get(r)
            if lw is not None:
                pk, pp, pex = lw
                req = 0
                if pk == "mfma" and kind != "mfma": req = 8
                if pk == "mfma" and kind == "mfma" and not (pex == dexact): req = 6
                if pk == "dot" and not (kind == "dot" and pex == opc): req = 3
                need = max(need, req - dist(pp))
            p = self.mfma_c_read.get(r)
            if p is not None and kind != "mfma":
                need = max(need, 3 - dist(p))
            p = self.store_data.get(r)
            if p is not None:
                need = max(need, 2 - dist(p))
        return need
    def ins(self, text, kind, rd=(), wr=(), csrc=(), dexact=None, widestore=()):
        rd = list(rd); wr = list(wr)
        opc = text.split()[0]
        self._autowait(rd + wr)
        n = self._need(kind, rd, wr, opc, csrc, dexact)
        if n > 0:
            self.nop(n)
        self.raw(text)
        p = self.pos
        self.pos += 1
        self.stats[kind] = self.stats.get(kind, 0) + 1
        tok = None
        if kind in ("dsread", "dswrite"):
            self.dsseq += 1
            self.ds.append((self.dsseq, set(wr)))
            tok = self.dsseq
            for r in wr: self.lastw.pop(r, None)
        elif kind in ("vload", "vstore", "dma"):
            self.vmseq += 1
            self.vm.append((self.vmseq, set(wr)))
            tok = self.vmseq
            for r in wr: self.lastw.pop(r, None)
            assert len(self.vm) <= 63, "too many outstanding vmem ops"
        else:
            for r in wr:
                ex = dexact if kind == "mfma" else (opc if kind == "dot" else None)
                self.lastw[r] = (kind, p, ex)
        if kind == "mfma":
            for r in csrc: self.mfma_c_read[r] = p
        for r in widestore: self.store_data[r] = p
        return tok
    def salu(self, text, rd=(), wr=()):
        return self.ins(text, "salu", rd, wr)
    def valu(self, text, rd=(), wr=()):
        return self.ins(text, "valu", rd, wr)
    def trans(self, text, rd=(), wr=()):
        return self.ins(text, "trans", rd, wr)
    def mfma(self, d, a, b, c=None, k=32):
        na = 4 if k == 32 else 2
        op = "v_mfma_f32_16x16x32_bf16" if k == 32 else "v_mfma_f32_16x16x16_bf16"
        cs = "0" if c is None else vr(c, 4)
        rd = V(a, na) + V(b, na) + ([] if c is None else V(c, 4))
        csrc = [] if c is None else V(c, 4)
        self._autowait(rd + V(d, 4))
        n1 = self._need("mfma", rd, [], op, csrc, c)
        n2 = self._need("mfma", [], V(d, 4), op, csrc, d)
        n = max(n1, n2)
        if n > 0: self.nop(n)
        self.raw("%s %s, %s, %s, %s" % (op, vr(d, 4), vr(a, na), vr(b, na), cs))
        p = self.pos; self.pos += 1
        self.stats["mfma"] = self.stats.get("mfma", 0) + 1
        for r in V(d, 4): self.lastw[r] = ("mfma", p, d)
        for r in csrc: self.mfma_c_read[r] = p
    def barrier(self):
        self.raw("s_barrier"); self.pos += 1
        self.stats["barrier"] = self.stats.get("barrier", 0) + 1
    def text(self):
        return "\n".join(self.out) + "\n"
```

```python
import sys, math, struct
from em16 import *
from asmlib import file_text

KNAME = "standalone__mixer_channel_mlp__prompt_kernel"
OPT = dict(phase1_only=0, stamps=0, rate=12, rot=1, nogelu=0, nocs=0, pf=1, spin=200000, nobar=0, nodma=0, nord=0, split=1, kchk=1, rdfast=1, ststamp=0, prio=0, vbudget=240, vpre=40, dmastep=6, fine=0, dmagap=7, adapt=1)
for a in sys.argv[2:]:
    k, v = a.split("=")
    OPT[k] = int(v)

UNIT = 8192
NU = 19
L_PW = 0
L_CS = 1024
L_ST = L_CS + 1024
L_B1 = L_ST + 2048
L_B2 = L_B1 + 1024
RING0 = UNIT
LDS_BYTES = (NU + 1) * UNIT
WS_PART = 0x1200000
WS_F1 = 0x2800000
WS_F2 = WS_F1 + 65536
WS_TS = 0x3000000
C0 = -2.0 * math.sqrt(2.0 / math.pi) * math.log2(math.e)
C1 = C0 * 0.044715
def f2u(x): return struct.unpack("<I", struct.pack("<f", x))[0]

SX, SW1, SW2, SWS, SOUT, SDBG, SB1, SB2 = 4, 8, 12, 16, 20, 24, 28, 32
sW, sTG, sG, sM, sKQ, sNQ, sWB = 36, 37, 38, 39, 40, 41, 42
sDBB = 43
sKW = 44; sKX = 53
sMK = 54
sT0, sT1 = 62, 63
sPB, sHB, sCSW, sCSR = 64, 65, 66, 67
sW2 = 68; sHL = 72
sPS, sLB, sSPIN, sB1A = 76, 77, 78, 79
sCOL = 80
sF1R, sF2R = 2, 3
sTS = 84; NSTAMP = 6
sWM = 98
sGM = 53
sE = 96
sNZ = 80
vA = 1
vDW, vDX, vDH = 5, 6, 7
vDF = vDX
vBC = 8
vT = 12
vK = 16
vAC = [22, 96]
AFR = 24; NHG = 3
ACC = [48, 64]
HOWN = 80
vONES = 88
vCS = 92
vX0, vX1 = 98, 99
vL16 = 100
vP2 = [5, 101, 102, 103]
vXA = [101, 102]
vQ = 104
vSY1 = 99
XF = 112
STG = [HOWN, HOWN + 4]
STS = [vQ, vQ + 4]
vTMP = ACC[1]

def X(c, kp, b): return XF + 16 * c + 8 * b + 4 * kp

class Gen:
    def __init__(self):
        self.e = Em()
        self.base = {}
        self.q = []
        self.credit = 0
        self.hg_issued = 0
        self.hgbuf = {}
        self.nbuf = 0
        self.unit_tok = {}
        self.unit_pos = {}
        self.free = list(range(1, NU + 1))
        self.next_alloc = 0
        self.nstamp = 0
        self.top_hooks = {}
        self.post_items = {}
        self.certified = -1
        self.nl = 0
        self.pub_pending = []
        self.published = -1
        self.misc = {}
        self.tag = ""
    def fork(self, tag):
        import copy
        g = Gen()
        g.e = self.e.fork()
        for k in ("base", "hgbuf", "unit_tok", "unit_pos", "misc"):
            setattr(g, k, dict(getattr(self, k)))
        for k in ("q", "free", "pub_pending"):
            setattr(g, k, list(getattr(self, k)))
        for k in ("credit", "hg_issued", "nbuf", "next_alloc", "nstamp", "certified", "nl", "published"):
            setattr(g, k, getattr(self, k))
        g.top_hooks = {k: list(v) for k, v in self.top_hooks.items()}
        g.post_items = {k: list(v) for k, v in self.post_items.items()}
        g.tag = tag
        return g
    def newlabel(self, p):
        self.nl += 1
        return "L%s_%s%d" % (self.tag, p, self.nl)
    def stamp(self, st=False):
        if OPT["ststamp"] and not st and self.nstamp > 0: return
        if OPT["stamps"] and self.nstamp < NSTAMP:
            r = sTS + 2 * self.nstamp
            self.e.raw("s_memtime s[%d:%d]" % (r, r + 1))
            self.e.pos += 1
            self.e._wait(lgkm=0)
            self.nstamp += 1
    def off(self, reg, const):
        b = self.base.get(reg, 0)
        if not (0 <= const - b <= 65535 - 16):
            nb = (const // UNIT) * UNIT
            d = (nb - b) & 0xffffffff
            self.e.valu("v_add_u32 v%d, 0x%x, v%d" % (reg, d, reg), V(reg), V(reg))
            self.credit -= 4
            self.base[reg] = nb
            b = nb
        return const - b
    def trread(self, dst, reg, const):
        o = self.off(reg, const)
        return self.e.ins("ds_read_b64_tr_b16 %s, v%d offset:%d" % (vr(dst, 2), reg, o), "dsread", V(reg), V(dst, 2))
    def fill(self):
        rate = OPT["rate"]
        dl = self.misc.get("deadline")
        if OPT["adapt"] and dl is not None:
            left = dl - self.misc.get("mcount", 0)
            qc = sum(it[0] if it[0] != "delay" else 0 for it in self.q)
            nd = sum(it[1] for it in self.q if it[0] == "delay")
            rate = qc / max(left - nd - 2, 1) + 0.05
            rate = max(rate, 4.0)
        self.credit = min(self.credit + rate, max(rate + 4, 8))
        nother = 0
        while self.q:
            it = self.q[0]
            if it[0] == "delay":
                if it[1] <= 1: self.q.pop(0)
                else: self.q[0] = ("delay", it[1] - 1)
                return
            cost, fn = it
            if cost == 0:
                if nother >= 2: return
                nother += 1
            elif cost > self.credit:
                return
            self.q.pop(0)
            self.credit -= cost
            fn(self)
    def drain(self):
        while self.q:
            it = self.q.pop(0)
            if it[0] != "delay": it[1](self)
    def dma(self, lds_const, voff, srdreg, soff):
        e = self.e
        if OPT["nodma"] and self.misc.get("cur_stage", 0) > 5: return 0
        e.salu("s_add_u32 m0, s%d, %d" % (sWB, lds_const), S(sWB), ["m0"])
        return e.ins("buffer_load_dwordx4 v%d, %s, s%d offen lds" % (voff, sr(srdreg, 4), soff), "dma",
                     V(voff) + S(srdreg, 4) + S(soff) + ["m0"], [])

def VA(text, rd, wr): return (4, lambda G: G.e.valu(text, rd, wr))
def TR(text, rd, wr): return (8, lambda G: G.e.trans(text, rd, wr))
def OT(fn): return (0, fn)

def S_(e, text, rd=(), wr=()): e.salu(text, rd, wr)

def prologue(G):
    e = G.e
    e.raw("s_cmp_ge_u32 s2, 256"); e.raw("s_cbranch_scc1 L_end")
    if OPT["stamps"]:
        e.raw("s_memrealtime s[100:101]")
    e.raw("s_load_dwordx16 s[64:79], s[0:1], 0")
    e.raw("s_memrealtime s[%d:%d]" % (sE, sE + 1))
    e.valu("v_lshrrev_b32 v1, 6, v0", V(0), V(1))
    e.valu("v_and_b32 v0, 63, v0", V(0), V(0))
    e.ins("v_readfirstlane_b32 s%d, v1" % sW, "readlane", V(1), S(sW))
    S_(e, "s_and_b32 s%d, s2, 3" % sKQ, [], S(sKQ))
    S_(e, "s_lshr_b32 s%d, s2, 3" % sT0, [], S(sT0))
    S_(e, "s_and_b32 s%d, s%d, 3" % (sNQ, sT0), S(sT0), S(sNQ))
    S_(e, "s_lshr_b32 s%d, s%d, 2" % (sT0, sT0), S(sT0), S(sT0))
    S_(e, "s_lshl_b32 s%d, s2, 1" % sM, [], S(sM))
    S_(e, "s_and_b32 s%d, s%d, 8" % (sM, sM), S(sM), S(sM))
    S_(e, "s_add_u32 s%d, s%d, s%d" % (sM, sM, sT0), S(sM) + S(sT0), S(sM))
    S_(e, "s_and_b32 s%d, s%d, 3" % (sTG, sW), S(sW), S(sTG))
    S_(e, "s_lshr_b32 s%d, s%d, 2" % (sG, sW), S(sW), S(sG))
    S_(e, "s_lshl_b32 s%d, s%d, 10" % (sWB, sW), S(sW), S(sWB))
    sROT = sT1
    if OPT["rot"]:
        S_(e, "s_lshl1_add_u32 s%d, s%d, s%d" % (sROT, sNQ, sT0), S(sNQ) + S(sT0), S(sROT))
        S_(e, "s_sub_u32 s%d, s%d, 9" % (sT0, sROT), S(sROT), S(sT0))
        S_(e, "s_cmp_ge_u32 s%d, 9" % sROT, S(sROT), ["scc"])
        S_(e, "s_cselect_b32 s%d, s%d, s%d" % (sROT, sT0, sROT), S(sT0) + S(sROT), S(sROT))
    else:
        S_(e, "s_mov_b32 s%d, 0" % sROT, [], S(sROT))
    S_(e, "s_mul_i32 s3, s%d, %d" % (sM, 128 * 1152), S(sM), S(3))
    for c in range(9):
        S_(e, "s_add_u32 s%d, s%d, %d" % (sT0, sROT, c), S(sROT), S(sT0))
        S_(e, "s_sub_u32 s%d, s%d, 9" % (sKX + c, sT0), S(sT0), S(sKX + c))
        S_(e, "s_cmp_ge_u32 s%d, 9" % sT0, S(sT0), ["scc"])
        S_(e, "s_cselect_b32 s%d, s%d, s%d" % (sT0, sKX + c, sT0), S(sT0) + S(sKX + c), S(sT0))
        S_(e, "s_mul_i32 s%d, s%d, %d" % (sKW + c, sT0, 64 * 9216), S(sT0), S(sKW + c))
        S_(e, "s_lshl_b32 s%d, s%d, 7" % (sT0, sT0), S(sT0), S(sT0))
        S_(e, "s_add_u32 s%d, s%d, s3" % (sKX + c, sT0), S(sT0) + S(3), S(sKX + c))
    t = vTMP
    e.valu("v_lshrrev_b32 v%d, 3, v0" % t, V(0), V(t))
    e.valu("v_and_b32 v%d, 7, v0" % (t + 1), V(0), V(t + 1))
    e.valu("v_lshrrev_b32 v%d, 1, v%d" % (t + 2, t), V(t), V(t + 2))
    S_(e, "s_and_b32 s%d, s%d, 1" % (sT0, sW), S(sW), S(sT0))
    S_(e, "s_lshl_b32 s%d, s%d, 2" % (sT1, sT0), S(sT0), S(sT1))
    e.valu("v_or_b32 v%d, s%d, v%d" % (t + 3, sT1, t + 2), S(sT1) + V(t + 2), V(t + 3))
    e.valu("v_xor_b32 v%d, v%d, v%d" % (t + 3, t + 3, t + 1), V(t + 3) + V(t + 1), V(t + 3))
    S_(e, "s_lshl_b32 s%d, s%d, 3" % (sT1, sW), S(sW), S(sT1))
    e.valu("v_add_u32 v%d, s%d, v%d" % (t + 4, sT1, t), S(sT1) + V(t), V(t + 4))
    e.valu("v_mul_u32_u24 v%d, 1152, v%d" % (vDX, t + 4), V(t + 4), V(vDX))
    e.valu("v_lshl_add_u32 v%d, v%d, 4, v%d" % (vDX, t + 3, vDX), V(t + 3) + V(vDX), V(vDX))
    e.valu("v_bfe_u32 v%d, v0, 2, 3" % t, V(0), V(t))
    e.valu("v_add_u32 v%d, s%d, v%d" % (t, sT1, t), S(sT1) + V(t), V(t))
    e.valu("v_mul_u32_u24 v%d, 9216, v%d" % (vDW, t), V(t), V(vDW))
    e.valu("v_lshrrev_b32 v%d, 5, v0" % (t + 1), V(0), V(t + 1))
    e.valu("v_lshl_add_u32 v%d, v%d, 6, v%d" % (vDW, t + 1, vDW), V(t + 1) + V(vDW), V(vDW))
    S_(e, "s_lshl_b32 s%d, s%d, 1" % (sT0, sT0), S(sT0), S(sT0))
    e.valu("v_and_b32 v%d, 3, v0" % (t + 2), V(0), V(t + 2))
    e.valu("v_xor_b32 v%d, s%d, v%d" % (t + 2, sT0, t + 2), S(sT0) + V(t + 2), V(t + 2))
    e.valu("v_lshl_add_u32 v%d, v%d, 4, v%d" % (vDW, t + 2, vDW), V(t + 2) + V(vDW), V(vDW))
    e.valu("v_lshlrev_b32 v%d, 4, v0" % vL16, V(0), V(vL16))
    e.valu("v_mov_b32 v%d, 0" % vX0, [], V(vX0))
    S_(e, "s_lshl2_add_u32 s%d, s%d, s%d" % (sT0, sM, sKQ), S(sM) + S(sKQ), S(sT0))
    S_(e, "s_lshl3_add_u32 s%d, s%d, s%d" % (sT0, sT0, sW), S(sT0) + S(sW), S(sT0))
    S_(e, "s_lshl_b32 s%d, s%d, 7" % (sT0, sT0), S(sT0), S(sT0))
    S_(e, "s_add_u32 s%d, s%d, 0x%x" % (sT1, sT0, WS_F1), S(sT0), S(sT1))
    S_(e, "s_or_b32 s%d, s2, s%d" % (sNZ, sW), S(sW), S(sNZ))
    S_(e, "s_mov_b32 s%d, s%d" % (sF1R, sT1), S(sT1), S(sF1R))
    S_(e, "s_lshl2_add_u32 s%d, s%d, s%d" % (sT0, sM, sNQ), S(sM) + S(sNQ), S(sT0))
    S_(e, "s_lshl3_add_u32 s%d, s%d, s%d" % (sT0, sT0, sW), S(sT0) + S(sW), S(sT0))
    S_(e, "s_lshl_b32 s%d, s%d, 7" % (sT0, sT0), S(sT0), S(sT0))
    S_(e, "s_add_u32 s%d, s%d, 0x%x" % (sF2R, sT0, WS_F2), S(sT0), S(sF2R))
    e.raw("s_waitcnt lgkmcnt(0)"); e.pos += 1
    def srd(d, p, nbytes):
        S_(e, "s_mov_b32 s%d, s%d" % (d, p), [], S(d))
        S_(e, "s_mov_b32 s%d, s%d" % (d + 1, p + 1), [], S(d + 1))
        S_(e, "s_mov_b32 s%d, 0x%x" % (d + 2, nbytes), [], S(d + 2))
        S_(e, "s_mov_b32 s%d, 0x20000" % (d + 3), [], S(d + 3))
    srd(SX, 64, 2048 * 576 * 2)
    srd(SW1, 66, 576 * 4608 * 2)
    srd(SWS, 78, 0x4000000)
    srd(SB1, 68, 4608 * 2)
    srd(SW2, 70, 4608 * 576 * 2)
    srd(SB2, 72, 576 * 2)
    srd(SOUT, 74, 2048 * 576 * 2)
    srd(SDBG, 76, 256)
    S_(e, "s_cmp_eq_u32 s%d, 3" % sNQ, S(sNQ), ["scc"])
    S_(e, "s_cselect_b32 s%d, 1, 0" % sT0, [], S(sT0))
    S_(e, "s_lshl2_add_u32 s%d, s%d, s%d" % (sPB, sNQ, sT0), S(sNQ) + S(sT0), S(sPB))
    S_(e, "s_mul_i32 s%d, s%d, 5" % (sDBB, sNQ), S(sNQ), S(sDBB))
    S_(e, "s_sub_u32 s%d, s%d, s%d" % (sDBB, sDBB, sT0), S(sDBB) + S(sT0), S(sDBB))
    S_(e, "s_lshl_b32 s%d, s%d, 6" % (sDBB, sDBB), S(sDBB), S(sDBB))
    S_(e, "s_mul_i32 s%d, s%d, 2304" % (sT0, sKQ), S(sKQ), S(sT0))
    S_(e, "s_lshl_b32 s%d, s%d, 7" % (sT1, sPB), S(sPB), S(sT1))
    S_(e, "s_add_u32 s%d, s%d, s%d" % (sB1A, sT0, sT1), S(sT0) + S(sT1), S(sB1A))
    e.valu("v_add_u32 v%d, s%d, v%d" % (vDW, sB1A, vDW), S(sB1A) + V(vDW), V(vDW))
    G.stamp()

def flag_store(G, srdreg, soff, val, tmp):
    e = G.e
    S_(e, "s_add_u32 s%d, s%d, %d" % (sT1, sE, val), S(sE), S(sT1))
    e.valu("v_mov_b32 v%d, s%d" % (tmp, sT1), S(sT1), V(tmp))
    e.valu("v_mov_b32 v%d, s%d" % (tmp + 1, sE + 1), S(sE + 1), V(tmp + 1))
    S_(e, "s_mov_b64 exec, 1", [], ["exec"])
    tok = e.ins("buffer_store_dwordx2 %s, off, %s, s%d sc1" % (vr(tmp, 2), sr(srdreg, 4), soff), "vstore", V(tmp, 2) + S(srdreg, 4) + S(soff), [])
    S_(e, "s_mov_b64 exec, -1", [], ["exec"])
    return tok

def nonce_store(G):
    e = G.e
    t = vTMP
    S_(e, "s_and_b32 s%d, s%d, 0xfffffff0" % (sE, sE), [], S(sE))
    S_(e, "s_or_b32 s%d, s%d, 0x80000000" % (sE + 1, sE + 1), [], S(sE + 1))
    e.valu("v_mov_b32 v%d, s%d" % (t, sE), S(sE), V(t))
    e.valu("v_mov_b32 v%d, s%d" % (t + 1, sE + 1), S(sE + 1), V(t + 1))
    S_(e, "s_cmp_eq_u32 s%d, 0" % sNZ, S(sNZ), ["scc"])
    S_(e, "s_cselect_b32 s%d, 0, 0x1000" % sT0, [], S(sT0))
    S_(e, "s_mov_b64 exec, 1", [], ["exec"])
    e.ins("buffer_store_dwordx2 %s, off, %s, s%d sc1" % (vr(t, 2), sr(SDBG, 4), sT0), "vstore", V(t, 2) + S(SDBG, 4) + S(sT0), [])
    S_(e, "s_mov_b64 exec, -1", [], ["exec"])

def prologue2(G):
    e = G.e
    t = vTMP
    S_(e, "s_mov_b32 m0, %d" % L_B1, [], ["m0"])
    e.ins("buffer_load_dwordx4 v%d, %s, s%d offen lds" % (vL16, sr(SB1, 4), sB1A), "dma", V(vL16) + S(SB1, 4) + S(sB1A) + ["m0"], [])
    S_(e, "s_mov_b32 m0, %d" % L_B2, [], ["m0"])
    e.ins("buffer_load_dwordx4 v%d, %s, s%d offen lds" % (vL16, sr(SB2, 4), sDBB), "dma", V(vL16) + S(SB2, 4) + S(sDBB) + ["m0"], [])
    sRHO = sCSW
    S_(e, "s_and_b32 s%d, s%d, 1" % (sRHO, sTG), S(sTG), S(sRHO))
    S_(e, "s_xor_b32 s%d, s%d, s%d" % (sRHO, sRHO, sG), S(sRHO) + S(sG), S(sRHO))
    e.valu("v_lshrrev_b32 v%d, 4, v0" % t, V(0), V(t))
    e.valu("v_bfe_u32 v%d, v0, 2, 2" % (t + 1), V(0), V(t + 1))
    e.valu("v_and_b32 v%d, 3, v0" % (t + 2), V(0), V(t + 2))
    e.valu("v_and_b32 v%d, 1, v%d" % (t + 3, t), V(t), V(t + 3))
    e.valu("v_lshlrev_b32 v%d, 10, v%d" % (t + 4, t), V(t), V(t + 4))
    e.valu("v_lshl_add_u32 v%d, v%d, 6, v%d" % (t + 4, t + 1, t + 4), V(t + 1) + V(t + 4), V(t + 4))
    e.valu("v_lshl_add_u32 v%d, v%d, 3, v%d" % (t + 4, t + 2, t + 4), V(t + 2) + V(t + 4), V(t + 4))
    S_(e, "s_lshr_b32 s%d, s%d, 1" % (sT0, sTG), S(sTG), S(sT0))
    e.valu("v_xor_b32 v%d, s%d, v%d" % (t + 3, sT0, t + 3), S(sT0) + V(t + 3), V(t + 3))
    e.valu("v_lshl_add_u32 v%d, v%d, 5, v%d" % (t + 5, t + 3, t + 4), V(t + 3) + V(t + 4), V(t + 5))
    e.valu("v_xor_b32 v%d, 32, v%d" % (t + 6, t + 5), V(t + 5), V(t + 6))
    for kp in range(2):
        S_(e, "s_xor_b32 s%d, s%d, %d" % (sT0, sRHO, kp), S(sRHO), S(sT0))
        S_(e, "s_lshl_b32 s%d, s%d, 12" % (sT0, sT0), S(sT0), S(sT0))
        S_(e, "s_lshl_b32 s%d, s%d, 9" % (sT1, sG), S(sG), S(sT1))
        S_(e, "s_add_u32 s%d, s%d, s%d" % (sT0, sT0, sT1), S(sT0) + S(sT1), S(sT0))
        for a in range(2):
            e.valu("v_add_u32 v%d, s%d, v%d" % (vA + 2 * a + kp, sT0, t + 5 + a), S(sT0) + V(t + 5 + a), V(vA + 2 * a + kp))
    e.valu("v_and_b32 v%d, 15, v0" % (t + 1), V(0), V(t + 1))
    e.valu("v_lshrrev_b32 v%d, 1, v%d" % (t + 2, t + 1), V(t + 1), V(t + 2))
    e.valu("v_xor_b32 v%d, v%d, v%d" % (t + 2, t + 2, t), V(t + 2) + V(t), V(t + 2))
    S_(e, "s_lshl_b32 s%d, s%d, 12" % (sT0, sTG), S(sTG), S(sT0))
    e.valu("v_lshlrev_b32 v%d, 7, v%d" % (t + 1, t + 1), V(t + 1), V(t + 1))
    e.valu("v_add_u32 v%d, s%d, v%d" % (t + 1, sT0, t + 1), S(sT0) + V(t + 1), V(t + 1))
    for kp in range(2):
        S_(e, "s_xor_b32 s%d, s%d, %d" % (sT0, sRHO, kp), S(sRHO), S(sT0))
        S_(e, "s_lshl_b32 s%d, s%d, 2" % (sT0, sT0), S(sT0), S(sT0))
        e.valu("v_xor_b32 v%d, s%d, v%d" % (t + 3, sT0, t + 2), S(sT0) + V(t + 2), V(t + 3))
        e.valu("v_lshl_add_u32 v%d, v%d, 4, v%d" % (vXA[kp], t + 3, t + 1), V(t + 3) + V(t + 1), V(vXA[kp]))
    for i in range(4):
        e.valu("v_mov_b32 v%d, 0x3f803f80" % (vONES + i), [], V(vONES + i))
    S_(e, "s_cmp_ge_u32 s%d, 2" % sTG, S(sTG), ["scc"])
    S_(e, "s_cselect_b64 vcc, -1, 0", [], ["vcc"])
    S_(e, "s_lshl_b32 s%d, s%d, 8" % (sCSR, sG), S(sG), S(sCSR))
    S_(e, "s_add_u32 s%d, s%d, %d" % (sCSR, sCSR, L_CS), S(sCSR), S(sCSR))
    S_(e, "s_lshl2_add_u32 s%d, s%d, s%d" % (sCSW, sTG, sCSR), S(sTG) + S(sCSR), S(sCSW))
    S_(e, "s_lshr_b32 s%d, s%d, 1" % (sT0, sTG), S(sTG), S(sT0))
    S_(e, "s_lshl3_add_u32 s%d, s%d, s%d" % (sCSR, sT0, sCSR), S(sT0) + S(sCSR), S(sCSR))
    S_(e, "s_lshl1_add_u32 s%d, s%d, s%d" % (sB1A, sG, sT0), S(sG) + S(sT0), S(sB1A))
    S_(e, "s_lshl_b32 s%d, s%d, 5" % (sB1A, sB1A), S(sB1A), S(sB1A))
    S_(e, "s_add_u32 s%d, s%d, %d" % (sB1A, sB1A, L_B1), S(sB1A), S(sB1A))
    S_(e, "s_mul_i32 s%d, s%d, 36" % (sT0, sKQ), S(sKQ), S(sT0))
    S_(e, "s_add_u32 s%d, s%d, s%d" % (sT0, sT0, sG), S(sT0) + S(sG), S(sT0))
    S_(e, "s_mul_i32 s%d, s%d, 144" % (sT1, sM), S(sM), S(sT1))
    S_(e, "s_add_u32 s%d, s%d, s%d" % (sT0, sT0, sT1), S(sT0) + S(sT1), S(sT0))
    S_(e, "s_lshl2_add_u32 s%d, s%d, s%d" % (sT0, sT0, sTG), S(sT0) + S(sTG), S(sT0))
    S_(e, "s_lshl_b32 s%d, s%d, 11" % (sT0, sT0), S(sT0), S(sT0))
    S_(e, "s_mul_i32 s%d, s%d, %d" % (sT1, sKQ, 1152 * 1152), S(sKQ), S(sT1))
    for k in range(4):
        n = sPS
        if k == 0: S_(e, "s_mov_b32 s%d, s%d" % (n, sNQ), S(sNQ), S(n))
        elif k == 1: S_(e, "s_xor_b32 s%d, s%d, 1" % (n, sNQ), S(sNQ), S(n))
        else:
            S_(e, "s_xor_b32 s%d, s%d, 2" % (n, sNQ), S(sNQ), S(n))
            S_(e, "s_and_b32 s%d, s%d, 2" % (n, n), S(n), S(n))
            if k == 3: S_(e, "s_add_u32 s%d, s%d, 1" % (n, n), S(n), S(n))
        S_(e, "s_cmp_eq_u32 s%d, 3" % n, S(n), ["scc"])
        S_(e, "s_cselect_b32 s%d, 1, 0" % sLB, [], S(sLB))
        S_(e, "s_lshl2_add_u32 s%d, s%d, s%d" % (n, n, sLB), S(n) + S(sLB), S(n))
        S_(e, "s_lshl_b32 s%d, s%d, 14" % (sHL + k, n), S(n), S(sHL + k))
        S_(e, "s_add_u32 s%d, s%d, s%d" % (sHL + k, sHL + k, sT0), S(sHL + k) + S(sT0), S(sHL + k))
        S_(e, "s_mul_i32 s%d, s%d, %d" % (sW2 + k, n, 64 * 1152), S(n), S(sW2 + k))
        S_(e, "s_add_u32 s%d, s%d, s%d" % (sW2 + k, sW2 + k, sT1), S(sW2 + k) + S(sT1), S(sW2 + k))
    S_(e, "s_mov_b32 s%d, s%d" % (sHB, sHL), S(sHL), S(sHB))
    S_(e, "s_cmp_eq_u32 s%d, 1" % sNQ, S(sNQ), ["scc"])
    S_(e, "s_cselect_b32 s%d, 64, 0" % sLB, [], S(sLB))
    S_(e, "s_add_u32 s%d, s%d, 256" % (sCOL + 2, sLB), S(sLB), S(sCOL + 2))
    S_(e, "s_add_u32 s%d, s%d, s%d" % (sLB, sLB, sDBB), S(sLB) + S(sDBB), S(sLB))
    S_(e, "s_xor_b32 s%d, s%d, 2" % (sT0, sKQ), S(sKQ), S(sT0))
    S_(e, "s_and_b32 s%d, s%d, 2" % (sT0, sT0), S(sT0), S(sT0))
    S_(e, "s_lshl_b32 s%d, s%d, 6" % (sT0, sT0), S(sT0), S(sT0))
    S_(e, "s_add_u32 s%d, s%d, s%d" % (sCOL, sT0, sLB), S(sT0) + S(sLB), S(sCOL))
    S_(e, "s_xor_b32 s%d, s%d, 1" % (sT0, sKQ), S(sKQ), S(sT0))
    S_(e, "s_lshl_b32 s%d, s%d, 6" % (sT0, sT0), S(sT0), S(sT0))
    S_(e, "s_add_u32 s%d, s%d, s%d" % (sCOL + 1, sT0, sLB), S(sT0) + S(sLB), S(sCOL + 1))
    S_(e, "s_lshl_b32 s%d, s%d, 6" % (sT0, sKQ), S(sKQ), S(sT0))
    S_(e, "s_add_u32 s%d, s%d, s%d" % (sCOL + 3, sT0, sLB), S(sT0) + S(sLB), S(sCOL + 3))
    S_(e, "s_lshl2_add_u32 s%d, s%d, s%d" % (sT0, sM, sNQ), S(sM) + S(sNQ), S(sT0))
    S_(e, "s_mul_i32 s%d, s%d, 160" % (sT0, sT0), S(sT0), S(sT0))
    S_(e, "s_lshl3_add_u32 s%d, s%d, s%d" % (sT0, sTG, sT0), S(sTG) + S(sT0), S(sT0))
    S_(e, "s_add_u32 s%d, s%d, s%d" % (sT0, sT0, sG), S(sT0) + S(sG), S(sT0))
    S_(e, "s_lshl_b32 s%d, s%d, 11" % (sT0, sT0), S(sT0), S(sT0))
    S_(e, "s_add_u32 s%d, s%d, 0x%x" % (sPS, sT0, WS_PART), S(sT0), S(sPS))
    e.valu("v_bfe_u32 v%d, v0, 4, 1" % t, V(0), V(t))
    e.valu("v_lshlrev_b32 v%d, 1, v%d" % (t, t), V(t), V(t))
    e.valu("v_and_b32 v%d, 3, v0" % (t + 1), V(0), V(t + 1))
    e.valu("v_xor_b32 v%d, v%d, v%d" % (t, t, t + 1), V(t, 2), V(t))
    S_(e, "s_and_b32 s%d, s%d, 1" % (sT0, sTG), S(sTG), S(sT0))
    S_(e, "s_lshl1_add_u32 s%d, s%d, s%d" % (sT0, sG, sT0), S(sG) + S(sT0), S(sT0))
    S_(e, "s_lshl_b32 s%d, s%d, 4" % (sT0, sT0), S(sT0), S(sT0))
    e.valu("v_lshrrev_b32 v%d, 2, v0" % (t + 1), V(0), V(t + 1))
    e.valu("v_add_u32 v%d, s%d, v%d" % (t + 1, sT0, t + 1), S(sT0) + V(t + 1), V(t + 1))
    e.valu("v_mul_u32_u24 v%d, 1152, v%d" % (vDH, t + 1), V(t + 1), V(vDH))
    e.valu("v_lshl_add_u32 v%d, v%d, 4, v%d" % (vDH, t, vDH), V(t) + V(vDH), V(vDH))

def init_progress(G):
    e = G.e
    S_(e, "s_lshl_b64 %s, 1, s%d" % (sr(sWM, 2), sW), S(sW), S(sWM, 2))
    S_(e, "s_mov_b64 exec, %s" % sr(sWM, 2), S(sWM, 2), ["exec"])
    tok = e.ins("ds_write_b32 v%d, v%d offset:%d" % (vL16, vX0, L_PW), "dswrite", V(vL16) + V(vX0), [])
    S_(e, "s_lshl_b32 s%d, s%d, 2" % (sT0, sG), S(sG), S(sT0))
    S_(e, "s_lshl_b32 s%d, 15, s%d" % (sGM, sT0), S(sT0), S(sGM))
    S_(e, "s_mov_b64 exec, -1", [], ["exec"])
    return tok

def arrive(G, s, tmp):
    e = G.e
    e.valu("v_mov_b32 v%d, %d" % (tmp, s + 1), [], V(tmp))
    S_(e, "s_mov_b64 exec, %s" % sr(sWM, 2), S(sWM, 2), ["exec"])
    e.ins("ds_write_b32 v%d, v%d offset:%d" % (vL16, tmp, L_PW), "dswrite", V(vL16) + V(tmp), [])
    S_(e, "s_mov_b64 exec, -1", [], ["exec"])

def sync_issue(G, tmp):
    G.e.ins("ds_read_b32 v%d, v%d offset:%d" % (tmp, vL16, L_PW), "dsread", V(vL16), V(tmp))

def sync_check(G, s, tmp, sameg=False):
    e = G.e
    pr = sMK + 6
    pr2 = sMK + 4
    lok = G.newlabel("bk"); lsp = G.newlabel("bs")
    def cond(raw):
        if raw:
            e.raw("v_cmp_gt_u32 %s, %d, v%d" % (sr(pr, 2), s + 1, tmp))
            if sameg: e.raw("v_cmp_gt_u32 %s, %d, v%d" % (sr(pr2, 2), s + 2, tmp))
            e.raw("s_nop 3")
            if sameg:
                e.raw("s_and_b32 s%d, s%d, s%d" % (pr2, pr2, sGM)); e.raw("s_or_b32 s%d, s%d, s%d" % (pr, pr, pr2))
            e.raw("s_and_b32 s%d, s%d, 0xff" % (pr, pr))
        else:
            e.valu("v_cmp_gt_u32 %s, %d, v%d" % (sr(pr, 2), s + 1, tmp), V(tmp), S(pr, 2))
            if sameg:
                e.valu("v_cmp_gt_u32 %s, %d, v%d" % (sr(pr2, 2), s + 2, tmp), V(tmp), S(pr2, 2))
                S_(e, "s_and_b32 s%d, s%d, s%d" % (pr2, pr2, sGM), S(pr2) + S(sGM), S(pr2))
                S_(e, "s_or_b32 s%d, s%d, s%d" % (pr, pr, pr2), S(pr) + S(pr2), S(pr))
            S_(e, "s_and_b32 s%d, s%d, 0xff" % (pr, pr), S(pr), S(pr) + ["scc"])
    cond(False)
    e.raw("s_cbranch_scc0 %s" % lok); e.pos += 1
    e.label(lsp)
    e.raw("s_sleep 1")
    e.raw("ds_read_b32 v%d, v%d offset:%d" % (tmp, vL16, L_PW))
    e.raw("s_waitcnt lgkmcnt(0)")
    cond(True)
    e.raw("s_cbranch_scc1 %s" % lsp)
    e.label(lok)

def setup_F_voffset():
    a, b = vQ + 2, vQ + 3
    L = []
    L.append(VA("v_bfe_u32 v%d, v0, 2, 3" % a, V(0), V(a)))
    L.append(VA("v_lshl_add_u32 v%d, s%d, 3, v%d" % (a, sW, a), S(sW) + V(a), V(a)))
    L.append(VA("v_mul_u32_u24 v%d, 1152, v%d" % (vDF, a), V(a), V(vDF)))
    L.append(VA("v_lshrrev_b32 v%d, 5, v0" % a, V(0), V(a)))
    L.append(VA("v_lshl_add_u32 v%d, v%d, 6, v%d" % (vDF, a, vDF), V(a) + V(vDF), V(vDF)))
    L.append(VA("v_bfe_u32 v%d, v0, 4, 1" % a, V(0), V(a)))
    L.append(VA("v_lshlrev_b32 v%d, 1, v%d" % (a, a), V(a), V(a)))
    L.append(VA("v_and_b32 v%d, 3, v0" % b, V(0), V(b)))
    L.append(VA("v_xor_b32 v%d, v%d, v%d" % (a, a, b), V(a) + V(b), V(a)))
    L.append(VA("v_lshl_add_u32 v%d, v%d, 4, v%d" % (vDF, a, vDF), V(a) + V(vDF), V(vDF)))
    L.append(OT(lambda G: G.misc.__setitem__("F_ready", 1)))
    return L

def setup_P2_addr():
    a, b = vQ + 2, vQ + 3
    F0, F1, H0, H1 = vP2
    L = []
    L.append(VA("v_bfe_u32 v%d, v0, 2, 3" % a, V(0), V(a)))
    L.append(VA("v_lshlrev_b32 v%d, 6, v%d" % (a, a), V(a), V(a)))
    L.append(VA("v_and_b32 v%d, 3, v0" % b, V(0), V(b)))
    L.append(VA("v_lshl_add_u32 v%d, v%d, 3, v%d" % (a, b, a), V(a) + V(b), V(a)))
    L.append(VA("v_bfe_u32 v%d, v0, 4, 1" % b, V(0), V(b)))
    L.append(VA("v_xor_b32 v%d, s%d, v%d" % (b, sG, b), S(sG) + V(b), V(b)))
    L.append(VA("v_lshl_add_u32 v%d, v%d, 5, v%d" % (a, b, a), V(a) + V(b), V(a)))
    L.append(VA("v_lshl_add_u32 v%d, s%d, 12, v%d" % (a, sG, a), S(sG) + V(a), V(a)))
    L.append(VA("v_lshrrev_b32 v%d, 5, v0" % b, V(0), V(b)))
    def chk(G): assert G.misc.get("w1_left", 1) == 0, "w1 DMAs outstanding"
    L.append(OT(chk))
    L.append(VA("v_lshl_add_u32 v%d, v%d, 10, v%d" % (F0, b, a), V(a) + V(b), V(F0)))
    L.append(VA("v_lshl_add_u32 v%d, v%d, 9, v%d" % (H0, b, a), V(a) + V(b), V(H0)))
    L.append(VA("v_xor_b32 v%d, 32, v%d" % (F1, F0), V(F0), V(F1)))
    L.append(VA("v_xor_b32 v%d, 32, v%d" % (H1, H0), V(H0), V(H1)))
    def rb(G):
        for r in vP2: G.base[r] = 0
    L.append(OT(rb))
    return L

def korder(typ):
    if typ == "A":
        o = [(0, 2)] + [(s, 0) for s in (0, 1, 2, 3)] + [(s, 1) for s in (0, 1, 2, 3)] + [(0, 3)] + \
            [(s, 2) for s in (1, 2, 3)] + [(s, 3) for s in (1, 2, 3)] + [(2, 4), (3, 4)]
    else:
        o = [(0, 3)] + [(s, 0) for s in (0, 1, 2, 3)] + [(s, 1) for s in (0, 1, 2, 3)] + [(0, 4)] + \
            [(s, 2) for s in (0, 1, 2, 3)] + [(s, 3) for s in (1, 2, 3)] + [(1, 4)]
    assert len(o) == 18
    regs = {}
    blk = 0
    for i, k in enumerate(o):
        if i == 0: regs[k] = HOWN
        else:
            regs[k] = XF + 8 * blk; blk += 1
    return o, regs

def plan(typ):
    npair = 4 if typ == "A" else 5
    stages = []
    for c in range(9):
        stages.append(dict(kind="X", c=c, units=[("x", c, 0), ("x", c, 1), ("w1", 0, c)]))
    for p in range(1, npair):
        for j in range(3):
            stages.append(dict(kind="W", p=p, j=j, units=[("w1", p, 3 * j + i) for i in range(3)]))
    if not OPT["phase1_only"]:
        for j in range(9):
            u = [("F", 2 * j), ("F", 2 * j + 1), ("H", 1, j)]
            if typ == "A": u.append(("H", 2, j))
            stages.append(dict(kind="PA", j=j, units=u))
        for j in range(3):
            stages.append(dict(kind="PB", j=j, units=[("H", 3, 3 * j + i) for i in range(3)]))
    return stages

def p2_quads(typ):
    npair = 4 if typ == "A" else 5
    last = ACC[(npair - 1) % 2]; other = ACC[npair % 2]
    early = [other + 4 * i for i in range(4)] + [vQ, vQ + 4, XF + 136, XF + 140, vONES, vCS]
    late = [last + 4 * i for i in range(4)] + [vBC, 96]
    allq = early + late
    nts = 4 if typ == "A" else 3
    d = {}
    i = 0
    for ts in range(nts):
        for a in range(2):
            for b in range(2):
                d[(ts, a, b)] = allq[i]; i += 1
    return d

def build_hgs(typ, stages):
    hgs = []
    ko, hreg = korder(typ)
    quads = p2_quads(typ)
    nts = 4 if typ == "A" else 3
    for s, st in enumerate(stages):
        if st["kind"] in ("X", "W"):
            p = 0 if st["kind"] == "X" else st["p"]
            chunks = [(st["c"], 2)] if st["kind"] == "X" else [(3 * st["j"] + i, i) for i in range(3)]
            for (c, ui) in chunks:
                for a in range(2):
                    reads = []
                    for kp in range(2):
                        for u in range(2):
                            reads.append((4 * kp + 2 * u, vA + 2 * a + kp, (s, ui), u * 256))
                    mf = []
                    for b in range(2):
                        acc = ACC[p % 2] + 8 * a + 4 * b
                        for kp in range(2):
                            mf.append((acc, 4 * kp, X(c, kp, b), c == 0 and kp == 0))
                    hg = dict(stage=s, reads=reads, mf=mf, p1=(p, c, a), last=(c == 8 and a == 1))
                    if st["kind"] == "X" and a == 0:
                        hg["xreads"] = [(X(c, kp, b), vXA[kp], (s, 0), b * 2048) for b in range(2) for kp in range(2)]
                    hgs.append(hg)
        elif st["kind"] == "PA":
            j = st["j"]
            for ts in range(nts):
                for a in range(2):
                    reads = []
                    for ki in range(2):
                        for u in range(2):
                            if ts < 2: reads.append((4 * ki + 2 * u, vP2[a], (s, ki), u * 2048 + ts * 512))
                            else: reads.append((4 * ki + 2 * u, vP2[2 + a], (s, ts), ki * 2048 + u * 1024))
                    mf = []
                    for b in range(2):
                        for ki in range(2):
                            mf.append((quads[(ts, a, b)], 4 * ki, hreg[ko[2 * j + ki]] + 4 * b, j == 0 and ki == 0))
                    hgs.append(dict(stage=s, reads=reads, mf=mf, lastA=(j == 8 and ts == nts - 1 and a == 1)))
        elif st["kind"] == "PB":
            j = st["j"]
            for i in range(3):
                jj = 3 * j + i
                for a in range(2):
                    reads = []
                    for ki in range(2):
                        for u in range(2):
                            reads.append((4 * ki + 2 * u, vP2[2 + a], (s, i), ki * 2048 + u * 1024))
                    mf = []
                    for b in range(2):
                        acc = quads[(a, 1, b)]
                        for ki in range(2):
                            mf.append((acc, 4 * ki, hreg[ko[2 * jj + ki]] + 4 * b, jj == 0 and ki == 0))
                    hgs.append(dict(stage=s, reads=reads, mf=mf, lastB=(jj == 8 and a == 1)))
    return hgs

def alloc_seq(typ, stages):
    seq = []
    for s, st in enumerate(stages):
        if st["kind"] == "PB" and st["j"] == 1:
            for i in range(8 if typ == "A" else 6): seq.append(("HAND", i))
        for ui in range(len(st["units"])): seq.append((s, ui))
    if not OPT["phase1_only"]:
        for i in range(2): seq.append(("HAND2", i))
    return seq

def unit_dma_item(typ, stages, uid):
    s, ui = uid
    ud = stages[s]["units"][ui]
    ko, _ = korder(typ)
    def f(G):
        e = G.e
        base = G.unit_pos[uid] * UNIT
        if ud[0] == "x":
            c, half = ud[1], ud[2]
            if half == 0: so = sKX + c
            else:
                S_(e, "s_add_u32 s%d, s%d, %d" % (sT0, sKX + c, 64 * 1152), S(sKX + c), S(sT0)); so = sT0
            G.unit_tok[uid] = G.dma(base, vDX, SX, so)
        elif ud[0] == "w1":
            p, c = ud[1], ud[2]
            if p > 0 and c == 0:
                e.valu("v_add_u32 v%d, 128, v%d" % (vDW, vDW), V(vDW), V(vDW))
            G.unit_tok[uid] = G.dma(base, vDW, SW1, sKW + c)
            G.misc["w1_left"] = 0 if (p == (3 if typ == "A" else 4) and c == 8) else 1
        elif ud[0] == "F":
            assert G.misc.get("F_ready")
            src, lev = ko[ud[1]]
            S_(e, "s_add_u32 s%d, s%d, s%d" % (sT0, sW2 + src, sCOL), S(sW2 + src) + S(sCOL), S(sT0))
            if lev: S_(e, "s_add_u32 s%d, s%d, %d" % (sT0, sT0, lev * 64 * 1152), S(sT0), S(sT0))
            G.unit_tok[uid] = G.dma(base, vDF, SW2, sT0)
        elif ud[0] == "H":
            role, j = ud[1], ud[2]
            (s0, l0), (s1, l1) = ko[2 * j], ko[2 * j + 1]
            S_(e, "s_add_u32 s%d, s%d, %d" % (sT0, sW2 + s0, l0 * 64 * 1152), S(sW2 + s0), S(sT0))
            S_(e, "s_add_u32 s%d, s%d, %d" % (sT1, sW2 + s1, l1 * 64 * 1152), S(sW2 + s1), S(sT1))
            S_(e, "s_cmp_ge_u32 s%d, 2" % sTG, S(sTG), ["scc"])
            S_(e, "s_cselect_b32 s%d, s%d, s%d" % (sT0, sT1, sT0), S(sT0) + S(sT1), S(sT0))
            S_(e, "s_add_u32 s%d, s%d, s%d" % (sT0, sT0, sCOL + role), S(sT0) + S(sCOL + role), S(sT0))
            G.unit_tok[uid] = G.dma(base, vDH, SW2, sT0)
    return OT(f)

def try_alloc(G, typ, stages, seq, limit_stage):
    items = []
    while G.next_alloc < len(seq):
        uid = seq[G.next_alloc]
        if isinstance(uid[0], int) and uid[0] > limit_stage: break
        if isinstance(uid[0], int) and stages[uid[0]]["kind"] == "X":
            want = (uid[0] % 6) * 3 + uid[1] + 1
            if want not in G.free: break
            G.free.remove(want); pos = want
        else:
            if not G.free: break
            pos = G.free.pop(0)
        G.unit_pos[uid] = pos
        G.next_alloc += 1
        if isinstance(uid[0], int):
            items.append(unit_dma_item(typ, stages, uid))
    return items

def issue_hg_reads(G, hgs, upto):
    while G.hg_issued < min(upto, len(hgs)):
        h = hgs[G.hg_issued]
        if h["stage"] > G.certified: break
        buf = AFR + 8 * G.nbuf
        assert buf not in G.hgbuf.values()
        G.nbuf = (G.nbuf + 1) % NHG
        pend = []
        for (dst, reg, uid, o) in h.get("xreads", []):
            pend.append(("x", dst, reg, uid, o))
        for (d, reg, uid, o) in h["reads"]:
            pend.append(("t", buf + d, reg, uid, o))
        G.hgbuf[G.hg_issued] = buf
        G.hg_issued += 1
        G.misc.setdefault("rdq", [])
        G.misc["rdq"] = G.misc["rdq"] + pend

def emit_reads(G, n):
    q = G.misc.get("rdq", [])
    while n > 0 and q:
        k, dst, reg, uid, o = q.pop(0)
        const = G.unit_pos[uid] * UNIT + o
        if k == "x":
            off = G.off(reg, const)
            G.e.ins("ds_read_b128 %s, v%d offset:%d" % (vr(dst, 4), reg, off), "dsread", V(reg), V(dst, 4))
        else:
            if not (OPT["nord"] and G.misc.get("cur_stage", 0) > 9): G.trread(dst, reg, const)
        n -= 1
    G.misc["rdq"] = q

def set_mask(e, pair, lo, hi):
    S_(e, "s_mov_b32 s%d, 0x%x" % (pair, lo), [], S(pair))
    S_(e, "s_mov_b32 s%d, 0x%x" % (pair + 1, hi), [], S(pair + 1))

def stats_pre(G):
    e = G.e
    m1, m2, md = sMK, sMK + 2, sMK + 4
    set_mask(e, m1, 0xAAAAAAAA, 0xAAAAAAAA); set_mask(e, m2, 0xCCCCCCCC, 0xCCCCCCCC); set_mask(e, md, 0x00F0000F, 0xF0000F00)
    e.valu("v_and_b32 v%d, 15, v0" % vX0, V(0), V(vX0))
    S_(e, "s_lshl_b32 s%d, s%d, 8" % (sT0, sW), S(sW), S(sT0))
    S_(e, "s_add_u32 s%d, s%d, %d" % (sT0, sT0, L_ST), S(sT0), S(sT0))
    e.valu("v_lshl_add_u32 v%d, v%d, 3, s%d" % (vX0, vX0, sT0), V(vX0) + S(sT0), V(vX0))
    for b in range(2):
        g0 = STG[b]
        e.valu("v_cndmask_b32 v%d, v%d, v%d, %s" % (g0, g0, g0 + 1, sr(m1, 2)), V(g0, 2) + S(m1, 2), V(g0))
        e.valu("v_cndmask_b32 v%d, v%d, v%d, %s" % (g0 + 2, g0 + 2, g0 + 3, sr(m1, 2)), V(g0 + 2, 2) + S(m1, 2), V(g0 + 2))
        e.valu("v_cndmask_b32 v%d, v%d, v%d, %s" % (STS[b] + 1, g0, g0 + 2, sr(m2, 2)), V(g0) + V(g0 + 2) + S(m2, 2), V(STS[b] + 1))
    S_(e, "s_mov_b64 exec, %s" % sr(md, 2), S(md, 2), ["exec"])
    for b in range(2):
        G.misc["cs_tok"] = e.ins("ds_write_b64 v%d, %s offset:%d" % (vX0, vr(STS[b], 2), b * 128), "dswrite", V(vX0) + V(STS[b], 2), [])
    S_(e, "s_mov_b64 exec, -1", [], ["exec"])

def stats_items():
    L = []
    g0m, g1m = sMK, sMK + 2
    L.append(VA("v_and_b32 v%d, 15, v0" % vX0, V(0), V(vX0)))
    def f(G):
        S_(G.e, "s_lshl_b32 s%d, s%d, 8" % (sT1, sTG), S(sTG), S(sT1))
        S_(G.e, "s_add_u32 s%d, s%d, %d" % (sT1, sT1, L_ST), S(sT1), S(sT1))
        G.e.valu("v_lshl_add_u32 v%d, v%d, 3, s%d" % (vX0, vX0, sT1), V(vX0) + S(sT1), V(vX0))
    L.append((4, f))
    for b in range(2):
        L.append(OT(lambda G, b=b: G.e.ins("ds_read2_b64 %s, v%d offset0:%d offset1:%d" % (vr(STG[b], 4), vX0, b * 16, 128 + b * 16), "dsread", V(vX0), V(STG[b], 4))))
    L.append(OT(lambda G: (set_mask(G.e, g0m, 0x0000FFFF, 0), set_mask(G.e, g1m, 0xFFFF0000, 0))))
    L.append(("delay", 3))
    for b in range(2):
        t = STG[b]; u = STS[b]
        k0, k1, s = vK + 3 * b, vK + 3 * b + 1, vK + 3 * b + 2
        bc = vBC + 2 * b
        L.append(VA("v_add_f32 v%d, v%d, v%d" % (t, t, t + 2), V(t) + V(t + 2), V(t)))
        L.append(VA("v_add_f32 v%d, v%d, v%d" % (t + 1, t + 1, t + 3), V(t + 1) + V(t + 3), V(t + 1)))
        L.append(VA("v_mul_f32 v%d, 0x%x, v%d" % (t, f2u(-1.0 / 576), t), V(t), V(t)))
        L.append(VA("v_mul_f32 v%d, 0x%x, v%d" % (t + 1, f2u(1.0 / 576), t + 1), V(t + 1), V(t + 1)))
        L.append(VA("v_fma_f32 v%d, -v%d, v%d, v%d" % (t + 1, t, t, t + 1), V(t, 2), V(t + 1)))
        L.append(VA("v_max_f32 v%d, 0, v%d" % (t + 1, t + 1), V(t + 1), V(t + 1)))
        L.append(VA("v_add_f32 v%d, 0x%x, v%d" % (t + 1, f2u(1e-5), t + 1), V(t + 1), V(t + 1)))
        L.append(TR("v_sqrt_f32 v%d, v%d" % (s, t + 1), V(t + 1), V(s)))
        L.append(TR("v_rsq_f32 v%d, v%d" % (t + 2, t + 1), V(t + 1), V(t + 2)))
        L.append(VA("v_cvt_pk_bf16_f32 v%d, v%d, v%d" % (u, t, t), V(t), V(u)))
        L.append(VA("v_mul_f32 v%d, 0x%x, v%d" % (k0, f2u(C0), t + 2), V(t + 2), V(k0)))
        L.append(VA("v_mul_f32 v%d, v%d, v%d" % (t + 3, t + 2, t + 2), V(t + 2), V(t + 3)))
        L.append(VA("v_lshlrev_b32 v%d, 16, v%d" % (u + 1, u), V(u), V(u + 1)))
        L.append(VA("v_mul_f32 v%d, v%d, v%d" % (t + 3, t + 3, t + 2), V(t + 3) + V(t + 2), V(t + 3)))
        L.append(VA("v_sub_f32 v%d, v%d, v%d" % (u + 1, t, u + 1), V(t) + V(u + 1), V(u + 1)))
        L.append(VA("v_mul_f32 v%d, 0x%x, v%d" % (k1, f2u(C1), t + 3), V(t + 3), V(k1)))
        L.append(VA("v_cvt_pk_bf16_f32 v%d, v%d, v%d" % (u + 2, u + 1, s), V(u + 1) + V(s), V(u + 2)))
        L.append(VA("v_and_b32 v%d, 0xffff0000, v%d" % (u + 3, u + 2), V(u + 2), V(u + 3)))
        L.append(VA("v_sub_f32 v%d, v%d, v%d" % (u + 3, s, u + 3), V(s) + V(u + 3), V(u + 3)))
        L.append(VA("v_cvt_pk_bf16_f32 v%d, 0, v%d" % (u + 3, u + 3), V(u + 3), V(u + 3)))
        L.append(VA("v_cndmask_b32 v%d, 0, v%d, %s" % (bc, u, sr(g0m, 2)), V(u) + S(g0m, 2), V(bc)))
        L.append(VA("v_cndmask_b32 v%d, 0, v%d, %s" % (bc + 1, u + 3, sr(g1m, 2)), V(u + 3) + S(g1m, 2), V(bc + 1)))
        L.append(VA("v_cndmask_b32 v%d, v%d, v%d, %s" % (bc + 1, bc + 1, u + 2, sr(g0m, 2)), V(bc + 1) + V(u + 2) + S(g0m, 2), V(bc + 1)))
    return L

def cs_write(G, tile):
    e = G.e
    e.valu("v_and_b32 v%d, 15, v0" % vX1, V(0), V(vX1))
    e.valu("v_lshl_add_u32 v%d, v%d, 4, s%d" % (vX1, vX1, sCSW), V(vX1) + S(sCSW), V(vX1))
    G.misc["cs_tok"] = e.ins("ds_write_b32 v%d, v%d offset:%d" % (vX1, vCS, (tile & 1) * 512), "dswrite", V(vX1) + V(vCS), [])

def epilogue_items(tile, hdst, dacc=None):
    acc = ACC[tile % 2]
    if dacc is None: dacc = acc
    T = vT
    A0, A2 = vAC
    L = []
    L.append(VA("v_and_b32 v%d, 15, v0" % A2, V(0), V(A2)))
    L.append(VA("v_lshl_add_u32 v%d, v%d, 4, s%d" % (A0, A2, sCSR), V(A2) + S(sCSR), V(A0)))
    L.append(OT(lambda G: G.e.ins("ds_read_b64 %s, v%d offset:%d" % (vr(T, 2), A0, (tile & 1) * 512), "dsread", V(A0), V(T, 2))))
    L.append(VA("v_xor_b32 v%d, 8, v%d" % (A0, A0), V(A0), V(A0)))
    L.append(OT(lambda G: G.e.ins("ds_read_b64 %s, v%d offset:%d" % (vr(T + 2, 2), A0, (tile & 1) * 512), "dsread", V(A0), V(T + 2, 2))))
    L.append(VA("v_lshl_add_u32 v%d, v%d, 1, s%d" % (A2, A2, sB1A), V(A2) + S(sB1A), V(A2)))
    L.append(OT(lambda G: G.e.ins("ds_read_u16 v%d, v%d offset:%d" % (A0, A2, tile * 128), "dsread", V(A2), V(A0))))
    L.append(VA("v_xor_b32 v%d, 32, v%d" % (A2, A2), V(A2), V(A2)))
    L.append(OT(lambda G: G.e.ins("ds_read_u16 v%d, v%d offset:%d" % (A2, A2, tile * 128), "dsread", V(A2), V(A2))))
    L.append(("delay", 4))
    L.append(VA("v_add_f32 v%d, v%d, v%d" % (T, T, T + 1), V(T, 2), V(T)))
    L.append(VA("v_add_f32 v%d, v%d, v%d" % (T + 2, T + 2, T + 3), V(T + 2, 2), V(T + 2)))
    for a in range(2):
        L.append(VA("v_lshlrev_b32 v%d, 16, v%d" % (vAC[a], vAC[a]), V(vAC[a]), V(vAC[a])))
    for a in range(2):
        L.append(VA("v_cvt_pk_bf16_f32 v%d, v%d, v%d" % (vAC[a] + 1, T + 2 * a, vAC[a]), V(T + 2 * a) + V(vAC[a]), V(vAC[a] + 1)))
    for a in range(2):
        L.append(VA("v_lshlrev_b32 v%d, 16, v%d" % (T + 2 * a + 1, vAC[a] + 1), V(vAC[a] + 1), V(T + 2 * a + 1)))
    for a in range(2):
        L.append(VA("v_sub_f32 v%d, v%d, v%d" % (T + 2 * a, T + 2 * a, T + 2 * a + 1), V(T + 2 * a, 2), V(T + 2 * a)))
    for a in range(2):
        L.append(VA("v_cvt_pk_bf16_f32 v%d, v%d, v%d" % (vAC[a], T + 2 * a + 1, T + 2 * a), V(T + 2 * a, 2), V(vAC[a])))
    L.append(("delay", 1))
    for a in range(2):
        for b in range(2):
            L.append((4, lambda G, a=a, b=b: G.e.mfma(dacc + 8 * a + 4 * b, vAC[a], vBC + 2 * b, acc + 8 * a + 4 * b, k=16)))
    L.append(OT(lambda G: G.misc.__setitem__("corr_done", tile)))
    L.append(("delay", 2))
    for b in range(2):
        k0, k1, s = vK + 3 * b, vK + 3 * b + 1, vK + 3 * b + 2
        for a in range(2):
            q = [dacc + 8 * a + 4 * b + i for i in range(4)]
            if not OPT["nogelu"]:
                for i in range(4): L.append(VA("v_mul_f32 v%d, v%d, v%d" % (T + i, q[i], q[i]), V(q[i]), V(T + i)))
                for i in range(4): L.append(VA("v_fma_f32 v%d, v%d, v%d, v%d" % (T + i, T + i, k1, k0), V(T + i) + V(k1) + V(k0), V(T + i)))
                for i in range(4): L.append(VA("v_mul_f32 v%d, v%d, v%d" % (T + i, q[i], T + i), V(q[i]) + V(T + i), V(T + i)))
                for i in range(4): L.append(TR("v_exp_f32 v%d, v%d" % (T + i, T + i), V(T + i), V(T + i)))
                for i in range(4): L.append(VA("v_fma_f32 v%d, v%d, v%d, v%d" % (T + i, T + i, s, s), V(T + i) + V(s), V(T + i)))
                for i in range(4): L.append(TR("v_rcp_f32 v%d, v%d" % (T + i, T + i), V(T + i), V(T + i)))
                for i in range(4): L.append(VA("v_mul_f32 v%d, v%d, v%d" % (q[i], q[i], T + i), V(q[i]) + V(T + i), V(q[i])))
            for i in range(2):
                d = hdst + 4 * b + 2 * a + i
                L.append(VA("v_cvt_pk_bf16_f32 v%d, v%d, v%d" % (d, q[2 * i], q[2 * i + 1]), V(q[2 * i]) + V(q[2 * i + 1]), V(d)))
        def sw(G, b=b):
            e = G.e
            lab = G.newlabel("sw")
            e.raw("s_cbranch_vccz %s" % lab); e.pos += 1
            p0 = e.pos
            for i in range(2):
                r0, r1 = hdst + 4 * b + i, hdst + 4 * b + 2 + i
                e.valu("v_swap_b32 v%d, v%d" % (r0, r1), V(r0) + V(r1), V(r0) + V(r1))
            e.pos = p0
            for r in V(hdst + 4 * b, 4): e.lastw[r] = ("valu", p0 - 1, None)
            e.label(lab)
        L.append((4, sw))
        def st(G, b=b):
            e = G.e
            S_(e, "s_add_u32 s%d, s%d, %d" % (sT1, sHB, tile * 16384 + b * 1024), S(sHB), S(sT1))
            tok = e.ins("buffer_store_dwordx4 %s, v%d, %s, s%d offen sc1" % (vr(hdst + 4 * b, 4), vL16, sr(SWS, 4), sT1), "vstore",
                        V(hdst + 4 * b, 4) + V(vL16) + S(SWS, 4) + S(sT1), [], widestore=V(hdst + 4 * b, 4))
            if b == 1:
                G.pub_pending.append([tile, tok, G.misc["cur_stage"]])
                G.misc["h_done"] = tile
        L.append(OT(st))
    return L

def poll(G, srdreg, saddr, tmp, need, kind):
    pr = sMK + 6; pr2 = sMK + 4
    def load_txt():
        if kind == "flag":
            return ["v_and_b32 v%d, 3, v0" % tmp, "v_lshlrev_b32 v%d, 3, v%d" % (tmp, tmp),
                    "buffer_load_dwordx2 %s, v%d, %s, s%d offen sc1" % (vr(tmp, 2), tmp, sr(srdreg, 4), saddr)]
        return ["buffer_load_dwordx2 %s, off, %s, 0 sc1" % (vr(tmp, 2), sr(srdreg, 4))]
    def cond_txt():
        if kind == "flag":
            return ["s_add_u32 s%d, s%d, %d" % (sT0, sE, need),
                    "v_subrev_u32 v%d, s%d, v%d" % (tmp, sT0, tmp),
                    "v_cmp_ne_u32 %s, s%d, v%d" % (sr(pr2, 2), sE + 1, tmp + 1),
                    "v_cmp_lt_u32 %s, %d, v%d" % (sr(pr, 2), 15 - need, tmp),
                    "s_nop 2",
                    "s_or_b64 %s, %s, %s" % (sr(pr, 2), sr(pr, 2), sr(pr2, 2))]
        return ["v_readfirstlane_b32 s%d, v%d" % (sE, tmp), "v_readfirstlane_b32 s%d, v%d" % (sE + 1, tmp + 1),
                "s_nop 2", "s_cmp_eq_u32 s%d, 0" % (sE + 1)]
    def issue(G):
        e = G.e
        t = load_txt()
        for x in t[:-1]: e.valu(x, V(0) + V(tmp), V(tmp))
        e.ins(t[-1], "vload", V(tmp) + S(srdreg, 4) + (S(saddr) if kind == "flag" else []), V(tmp, 2))
    def check(G):
        e = G.e
        lok = G.newlabel("ok"); lsp = G.newlabel("sp")
        e._autowait(V(tmp, 2))
        for x in cond_txt(): e.raw(x); e.pos += 1
        e.raw("s_cbranch_scc0 %s" % lok); e.pos += 1
        e.raw("s_mov_b32 s%d, %d" % (sSPIN, OPT["spin"]))
        e.label(lsp)
        e.raw("s_sleep 2")
        for x in load_txt(): e.raw(x)
        e.raw("s_waitcnt vmcnt(0)")
        for x in cond_txt(): e.raw(x)
        e.raw("s_cbranch_scc0 %s" % lok)
        e.raw("s_sub_u32 s%d, s%d, 1" % (sSPIN, sSPIN))
        e.raw("s_cmp_lg_u32 s%d, 0" % sSPIN)
        e.raw("s_cbranch_scc1 %s" % lsp)
        e.label(lok)
        e.nop(2)
    return issue, check

def hload_items(typ, level):
    ko, hreg = korder(typ)
    keep = [(0, 2), (0, 3)] if typ == "A" else [(0, 3), (0, 4)]
    L = []
    for k in ko:
        if k[1] == level and k not in keep:
            def f(G, k=k):
                e = G.e
                r = hreg[k]
                assert G.misc.get("xdead", -1) >= (r + 7 - XF) // 16, ("x regs still live", k, r, G.misc.get("xdead"))
                if k in (ko[16], ko[17]):
                    assert G.misc.get("h_done", -1) == (3 if typ == "A" else 4), "last epilogue not finished"
                S_(e, "s_add_u32 s%d, s%d, %d" % (sT1, sHL + k[0], k[1] * 16384), S(sHL + k[0]), S(sT1))
                for b in range(2):
                    e.ins("buffer_load_dwordx4 %s, v%d, %s, s%d offen offset:%d sc1" % (vr(r + 4 * b, 4), vL16, sr(SWS, 4), sT1, b * 1024), "vload",
                          V(vL16) + S(SWS, 4) + S(sT1), V(r + 4 * b, 4))
            L.append(OT(f))
    return L

def publish(G, typ, s, tmp):
    npair = 4 if typ == "A" else 5
    while G.pub_pending and (s - G.pub_pending[0][2] >= 2 or (G.pub_pending[0][0] == npair - 1 and s - G.pub_pending[0][2] >= 1)):
        tile, tok, _ = G.pub_pending.pop(0)
        G.e.wait_vm_token(tok)
        S_(G.e, "s_lshl3_add_u32 s%d, s%d, s%d" % (sT0, sNQ, sF1R), S(sNQ) + S(sF1R), S(sT0))
        flag_store(G, SWS, sT0, 15 if tile == npair - 1 else tile + 1, tmp)
        G.published = tile

def vrun(G, budget):
    while G.q and budget > 0:
        it = G.q.pop(0)
        if it[0] == "delay": continue
        it[1](G)
        budget -= max(it[0], 1)

def qcost(G):
    return sum(it[0] for it in G.q if it[0] != "delay")

def run_stages(G, typ, stages, seq, hgs, s_from, s_to):
    e = G.e
    npair = 4 if typ == "A" else 5
    nP1 = 9 + 3 * (npair - 1)
    ko, hreg = korder(typ)
    late = [ACC[(npair - 1) % 2] + 4 * i for i in range(4)] + [vBC, 96]
    for s in range(s_from, s_to):
        st = stages[s]
        G.misc["cur_stage"] = s
        e.comment("==== stage %d %s" % (s, {k: v for k, v in st.items() if k != "units"}))
        if OPT["ststamp"] and s >= OPT["ststamp"]: G.stamp(True)
        isx = st["kind"] == "X"
        hard = isx or s in (9, nP1, nP1 + 9) or not OPT["split"]
        p1 = st["kind"] in ("X", "W")
        stmp = vSY1 if p1 else vA + 2
        ahead = 1 if (isx or not OPT["split"]) else 2
        for h in G.top_hooks.pop(s, []): h(G)
        for sa in range(s + 1, min(s + ahead, len(stages) - 1) + 1):
            for ui in range(len(stages[sa]["units"])):
                while (sa, ui) not in G.unit_tok:
                    assert G.misc["dmaq"], ("dma not allocated in time", s, sa, ui)
                    G.misc["dmaq"].pop(0)[1](G)
            e.wait_vm_token(max(G.unit_tok[(sa, ui)] for ui in range(len(stages[sa]["units"]))))
        G.misc["cert_at"] = dict(G.misc.get("cert_at", {})); G.misc["cert_at"][s] = s + ahead
        def after_sync(G, k):
            while G.misc.get("synced", -1) < k:
                kk = G.misc.get("synced", -1) + 1
                G.misc["synced"] = kk
                G.certified = G.misc["cert_at"][kk]
                if kk > 0:
                    for ui in range(len(stages[kk - 1]["units"])): G.free.append(G.unit_pos[(kk - 1, ui)])
                G.q = G.post_items.pop(("pre", kk), []) + G.q + G.post_items.pop(kk, [])
            if not OPT["phase1_only"]:
                publish(G, typ, s, stmp - 1)
            dm = try_alloc(G, typ, stages, seq, s + 7)
            if isx: G.q = dm + G.q
            else: G.misc["dmaq"] = G.misc.get("dmaq", []) + dm
        pend_check = False
        if hard:
            e.barrier()
            after_sync(G, s)
        else:
            arrive(G, s, stmp)
            if G.misc.get("synced", -1) < s - 1:
                if OPT["kchk"] <= 1: sync_issue(G, stmp)
                pend_check = True
            else:
                after_sync(G, s - 1)
        idx = [i for i, h in enumerate(hgs) if h["stage"] == s]
        def gap():
            G.misc["mcount"] = G.misc.get("mcount", 0) + 1
            G.fill()
            emit_reads(G, OPT["rdfast"] if not isx else 2)
            G.misc["gapn"] = G.misc.get("gapn", 0) + 1
            if G.misc.get("dmaq") and G.misc["gapn"] >= OPT["dmagap"]:
                G.misc["dmaq"] = list(G.misc["dmaq"])
                G.misc["dmaq"].pop(0)[1](G)
                G.misc["gapn"] = 0
        for hn, hi in enumerate(idx):
            h = hgs[hi]
            if pend_check and hn == OPT["kchk"] - 1 and hn > 0: sync_issue(G, stmp)
            if pend_check and hn == OPT["kchk"]:
                sg = ("sg", s) in G.post_items
                sync_check(G, s - 1, stmp, sg)
                after_sync(G, s - 1)
                if sg: G.q = G.q + G.post_items.pop(("sg", s))
                for hk in G.top_hooks.pop(("v", s), []): hk(G)
            issue_hg_reads(G, hgs, hi + 1)
            buf = G.hgbuf[hi]
            while any((k == "t" and buf <= d < buf + 8) or (k == "x" and any(d == m[2] for m in h["mf"])) for (k, d, r, u, o) in G.misc.get("rdq", [])):
                emit_reads(G, 1)
            for n, (acc, ao, breg, first) in enumerate(h["mf"]):
                if first and st["kind"] == "W":
                    while st["p"] >= 2 and G.misc.get("h_done", -1) < st["p"] - 2:
                        G.credit = 100; G.fill()
                if st["kind"] == "PA" and st["j"] == 0 and first:
                    while G.misc.get("h_done", -1) < npair - 2:
                        G.credit = 100; G.fill()
                    if acc in late:
                        while G.misc.get("corr_done", -1) < npair - 1:
                            G.credit = 100; G.fill()
                if st["kind"] == "PA" and breg in (hreg[(0, npair - 1)], hreg[(0, npair - 1)] + 4):
                    while G.misc.get("h_done", -1) < npair - 1:
                        G.credit = 100; G.fill()
                if n == 0: e._autowait(V(buf, 8))
                e.mfma(acc, buf + ao, breg, None if first else acc)
                if n == 0:
                    G.hgbuf.pop(hi - 1, None)
                    issue_hg_reads(G, hgs, hi + 3)
                gap()
            if "p1" in h:
                p, c, a = h["p1"]
                if not OPT["nocs"] and a == 0:
                    e.mfma(vCS, vONES, buf, None if c == 0 else vCS)
                    gap()
                if isx:
                    for b in range(2):
                        if a == 0: e.mfma(STG[b], X(c, 0, b), X(c, 0, b), None if c == 0 else STG[b])
                        else: e.mfma(STS[b], vONES, X(c, 1, b), None if c == 0 else STS[b])
                        gap()
                if p == npair - 1 and a == 1: G.misc["xdead"] = c
                if h["last"]:
                    if p == 0:
                        G.drain()
                        stats_pre(G)
                    cs_write(G, p)
                    G.misc["deadline"] = (G.misc["mcount"] + (81 if not OPT["nocs"] else 72)) if p < npair - 1 else None
                    def th(G): G.e.wait_ds_token(G.misc["cs_tok"])
                    if s + 1 in (9, nP1) or not OPT["split"]:
                        G.top_hooks.setdefault(s + 1, []).append(th)
                    items = []
                    if p == 0: items += stats_items()
                    if p == npair - 1 and not OPT["phase1_only"]:
                        items += epilogue_items(p, hreg[(0, p)], dacc=hreg[ko[16]])
                        assert hreg[ko[17]] == hreg[ko[16]] + 8
                    else:
                        items += epilogue_items(p, HOWN)
                    if s + 1 in (9, nP1) or not OPT["split"]: G.post_items.setdefault(s + 1, []).extend(items)
                    else: G.post_items.setdefault(("sg", s + 1), []).extend(items)
            if h.get("lastA"): end_passA(G, typ, stages, s)

def end_passA(G, typ, stages, s):
    e = G.e
    G.drain()
    quads = p2_quads(typ)
    nts = 4 if typ == "A" else 3
    aw, ar = vA, vA + 3
    e.valu("v_add_u32 v%d, s%d, v%d" % (aw, sWB, vL16), S(sWB) + V(vL16), V(aw))
    e.valu("v_xor_b32 v%d, 0x1000, v%d" % (ar, aw), V(aw), V(ar))
    G.base[aw] = 0; G.base[ar] = 0
    for ts in range(nts):
        for b in range(2):
            q = quads[(ts, 1, b)]
            o = G.off(aw, G.unit_pos[("HAND", 2 * ts + b)] * UNIT)
            G.misc["cs_tok"] = e.ins("ds_write_b128 v%d, %s offset:%d" % (aw, vr(q, 4), o), "dswrite", V(aw) + V(q, 4), [])
    def th(G): G.e.wait_ds_token(G.misc["cs_tok"])
    G.top_hooks.setdefault(s + 1, []).append(th)
    L = []
    rbuf = [vT, vK, quads[(2, 1, 0)], quads[(2, 1, 1)]]
    n = 0
    seq = [(ts, b) for ts in range(nts) for b in range(2)]
    def rd(ts, b, r):
        def f(G):
            o = G.off(ar, G.unit_pos[("HAND", 2 * ts + b)] * UNIT)
            G.e.ins("ds_read_b128 %s, v%d offset:%d" % (vr(r, 4), ar, o), "dsread", V(ar), V(r, 4))
        return OT(f)
    for i in range(min(4, len(seq))): L.append(rd(seq[i][0], seq[i][1], rbuf[i % 4]))
    L.append(("delay", 2))
    for i, (ts, b) in enumerate(seq):
        q = quads[(ts, 0, b)]; r = rbuf[i % 4]
        for k in range(4):
            L.append(VA("v_add_f32 v%d, v%d, v%d" % (q + k, q + k, r + k), V(q + k) + V(r + k), V(q + k)))
        if i + 4 < len(seq): L.append(rd(seq[i + 4][0], seq[i + 4][1], r))
        def st(G, ts=ts, b=b, q=q):
            e = G.e
            if b == 0:
                if ts < 2:
                    S_(e, "s_and_b32 s%d, s%d, 2" % (sMK, sKQ), S(sKQ), S(sMK))
                    S_(e, "s_xor_b32 s%d, s%d, %d" % (sMK, sMK, 2 + ts), S(sMK), S(sMK))
                elif ts == 2: S_(e, "s_xor_b32 s%d, s%d, 1" % (sMK, sKQ), S(sKQ), S(sMK))
                else: S_(e, "s_mov_b32 s%d, 4" % sMK, [], S(sMK))
                S_(e, "s_lshl4_add_u32 s%d, s%d, s%d" % (sMK, sMK, sKQ), S(sMK) + S(sKQ), S(sMK))
                S_(e, "s_lshl_b32 s%d, s%d, 12" % (sMK, sMK), S(sMK), S(sMK))
                S_(e, "s_add_u32 s%d, s%d, s%d" % (sMK, sMK, sPS), S(sMK) + S(sPS), S(sMK))
            G.misc["ptok"] = e.ins("buffer_store_dwordx4 %s, v%d, %s, s%d offen offset:%d sc1" % (vr(q, 4), vL16, sr(SWS, 4), sMK, b * 1024), "vstore",
                                   V(q, 4) + V(vL16) + S(SWS, 4) + S(sMK), [], widestore=V(q, 4))
        L.append(OT(st))
    L.append(OT(lambda G: G.misc.__setitem__("psent", G.misc["cur_stage"])))
    G.post_items.setdefault(("pre", s + 1), []).extend(L)
    def pub(G):
        G.drain()
        G.e.wait_vm_token(G.misc["ptok"])
        S_(G.e, "s_lshl3_add_u32 s%d, s%d, s%d" % (sT0, sKQ, sF2R), S(sKQ) + S(sF2R), S(sT0))
        flag_store(G, SWS, sT0, 1, vA + 1)
    G.top_hooks.setdefault(s + OPT.get("pubd", 2), []).append(pub)

def final(G, typ, stages):
    e = G.e
    quads = p2_quads(typ)
    G.drain()
    aw, ar = vA, vA + 3
    own = [quads[(0, 1, b)] for b in range(2)]
    give = [quads[(1, 1, b)] for b in range(2)]
    iss, chk = poll(G, SWS, sF2R, vA + 1, 1, "flag")
    iss(G)
    for b in range(2):
        o = G.off(aw, G.unit_pos[("HAND2", b)] * UNIT)
        tok = e.ins("ds_write_b128 v%d, %s offset:%d" % (aw, vr(give[b], 4), o), "dswrite", V(aw) + V(give[b], 4), [])
    e.valu("v_lshrrev_b32 v%d, 4, v0" % (22), V(0), V(22))
    S_(e, "s_lshl_b32 s%d, s%d, 5" % (sT0, sG), S(sG), S(sT0))
    S_(e, "s_sub_u32 s%d, s%d, s%d" % (sT0, sT0, sDBB), S(sT0) + S(sDBB), S(sT0))
    S_(e, "s_add_u32 s%d, s%d, %d" % (sT0, sT0, L_B2), S(sT0), S(sT0))
    e.valu("v_lshl_add_u32 v%d, v%d, 3, s%d" % (22, 22, sT0), V(22) + S(sT0), V(22))
    e.wait_ds_token(tok)
    e.barrier()
    R = AFR
    for b in range(2):
        o = G.off(ar, G.unit_pos[("HAND2", b)] * UNIT)
        e.ins("ds_read_b128 %s, v%d offset:%d" % (vr(R + 4 * b, 4), ar, o), "dsread", V(ar), V(R + 4 * b, 4))
    chk(G)
    G.stamp()
    def finish_tile(acc, col_s, j_s_setup, srcs, first_is_init):
        j_s_setup()
        bufs = []
        for n, d in enumerate(srcs):
            S_(e, "s_add_u32 s%d, s%d, %d" % (sT0, sKQ, d), S(sKQ), S(sT0))
            S_(e, "s_and_b32 s%d, s%d, 3" % (sT0, sT0), S(sT0), S(sT0))
            S_(e, "s_lshl_b32 s%d, s%d, 12" % (sT0, sT0), S(sT0), S(sT0))
            S_(e, "s_add_u32 s%d, s%d, s%d" % (sT0, sT0, sMK), S(sT0) + S(sMK), S(sT0))
            for b in range(2):
                r = XF + 8 * n + 4 * b
                e.ins("buffer_load_dwordx4 %s, v%d, %s, s%d offen offset:%d sc1" % (vr(r, 4), vL16, sr(SWS, 4), sT0, b * 1024), "vload",
                      V(vL16) + S(SWS, 4) + S(sT0), V(r, 4))
        bb = XF + 64
        e.valu("v_add_u32 v%d, s%d, v%d" % (bb, col_s, 22), S(col_s) + V(22), V(bb))
        e.ins("ds_read_b64 %s, v%d" % (vr(bb, 2), bb), "dsread", V(bb), V(bb, 2))
        oa = XF + 72
        e.valu("v_and_b32 v%d, 15, v0" % oa, V(0), V(oa))
        e.valu("v_mul_u32_u24 v%d, 1152, v%d" % (oa, oa), V(oa), V(oa))
        e.valu("v_lshrrev_b32 v%d, 4, v0" % (oa + 1), V(0), V(oa + 1))
        e.valu("v_lshl_add_u32 v%d, v%d, 3, v%d" % (oa, oa + 1, oa), V(oa, 2), V(oa))
        S_(e, "s_lshl2_add_u32 s%d, s%d, s%d" % (sT1, sM, sTG), S(sM) + S(sTG), S(sT1))
        S_(e, "s_mul_i32 s%d, s%d, %d" % (sT1, sT1, 32 * 1152), S(sT1), S(sT1))
        S_(e, "s_add_u32 s%d, s%d, s%d" % (sT1, sT1, col_s), S(sT1) + S(col_s), S(sT1))
        S_(e, "s_lshl_b32 s%d, s%d, 5" % (sT0, sG), S(sG), S(sT0))
        S_(e, "s_add_u32 s%d, s%d, s%d" % (sT1, sT1, sT0), S(sT1) + S(sT0), S(sT1))
        f = XF + 68
        e.valu("v_lshlrev_b32 v%d, 16, v%d" % (f, bb), V(bb), V(f))
        e.valu("v_and_b32 v%d, 0xffff0000, v%d" % (f + 1, bb), V(bb), V(f + 1))
        e.valu("v_lshlrev_b32 v%d, 16, v%d" % (f + 2, bb + 1), V(bb + 1), V(f + 2))
        e.valu("v_and_b32 v%d, 0xffff0000, v%d" % (f + 3, bb + 1), V(bb + 1), V(f + 3))
        for b in range(2):
            q = acc[b]
            for k in range(4):
                if first_is_init:
                    e.valu("v_mov_b32 v%d, v%d" % (q + k, f + k), V(f + k), V(q + k))
                else:
                    e.valu("v_add_f32 v%d, v%d, v%d" % (q + k, q + k, R + 4 * b + k), V(q + k) + V(R + 4 * b + k), V(q + k))
                    e.valu("v_add_f32 v%d, v%d, v%d" % (q + k, q + k, f + k), V(q + k) + V(f + k), V(q + k))
        for n in range(len(srcs)):
            for b in range(2):
                q = acc[b]; r = XF + 8 * n + 4 * b
                for k in range(4):
                    e.valu("v_add_f32 v%d, v%d, v%d" % (q + k, q + k, r + k), V(q + k) + V(r + k), V(q + k))
        for b in range(2):
            q = acc[b]
            e.valu("v_cvt_pk_bf16_f32 v%d, v%d, v%d" % (q, q, q + 1), V(q, 2), V(q))
            e.valu("v_cvt_pk_bf16_f32 v%d, v%d, v%d" % (q + 1, q + 2, q + 3), V(q + 2, 2), V(q + 1))
            if b == 1: S_(e, "s_add_u32 s%d, s%d, %d" % (sT1, sT1, 16 * 1152), S(sT1), S(sT1))
            e.ins("buffer_store_dwordx2 %s, v%d, %s, s%d offen" % (vr(q, 2), oa, sr(SOUT, 4), sT1), "vstore", V(q, 2) + V(oa) + S(SOUT, 4) + S(sT1), [])
    def j_own():
        S_(e, "s_lshl_b32 s%d, s%d, 16" % (sMK, sKQ), S(sKQ), S(sMK))
        S_(e, "s_add_u32 s%d, s%d, s%d" % (sMK, sMK, sPS), S(sMK) + S(sPS), S(sMK))
    finish_tile(own, sCOL + 3, j_own, (1, 2, 3), False)
    if typ == "A":
        lab = G.newlabel("nl")
        S_(e, "s_cmp_eq_u32 s%d, s%d" % (sTG, sKQ), S(sTG) + S(sKQ), ["scc"])
        e.raw("s_cbranch_scc0 %s" % lab); e.pos += 1
        def j_lone():
            S_(e, "s_add_u32 s%d, s%d, %d" % (sMK, sPS, 4 * 65536), S(sPS), S(sMK))
        finish_tile(give, sCOL + 2, j_lone, (0, 1, 2, 3), True)
        e.label(lab)

def finish(G):
    e = G.e
    G.drain()
    G.stamp()
    if OPT["stamps"]:
        e.raw("s_waitcnt vmcnt(0) lgkmcnt(0)")
        e.raw("s_memrealtime s[62:63]")
        e.raw("s_waitcnt lgkmcnt(0)")
        e.raw("v_mov_b32 v33, s62"); e.raw("v_mov_b32 v34, s100"); e.raw("v_mov_b32 v35, 0"); e.raw("v_mov_b32 v32, 0")
        e.raw("s_lshl2_add_u32 s%d, s%d, s%d" % (sT0, sM, sKQ))
        e.raw("s_lshl2_add_u32 s%d, s%d, s%d" % (sT0, sT0, sNQ))
        e.raw("s_lshl3_add_u32 s%d, s%d, s%d" % (sT0, sT0, sW))
        e.raw("s_lshl_b32 s%d, s%d, 6" % (sT0, sT0))
        e.raw("s_add_u32 s%d, s%d, 0x%x" % (sT0, sT0, WS_TS))
        for i in range(NSTAMP):
            e.raw("v_mov_b32 v%d, s%d" % (24 + i, sTS + 2 * i))
        e.raw("s_mov_b64 exec, 1")
        for i in range(3):
            e.raw("buffer_store_dwordx4 %s, off, %s, s%d offset:%d" % (vr(24 + 4 * i, 4), sr(SWS, 4), sT0, 16 * i))
    e.raw("s_endpgm")

def schedule_polls(G, typ, stages):
    npair = 4 if typ == "A" else 5
    nP1 = 9 + 3 * (npair - 1)
    ko, hreg = korder(typ)
    if typ == "A": chk_stage = {0: nP1 - 2, 1: nP1 - 1, 2: nP1 + 2, 3: nP1 + 4, 4: nP1 + 6}
    else: chk_stage = {0: nP1 - 2, 1: nP1 - 1, 2: nP1 + 2, 3: nP1 + 4, 4: nP1 + 6}
    for k in chk_stage:
        chk_stage[k] += OPT.get("pshift%d" % k, 0)
    for lev, cs in chk_stage.items():
        tmp = vQ + 4 * lev if cs <= nP1 - 1 else 22
        assert cs <= nP1 - 1 or cs >= nP1 + 2
        iss, chk = poll(G, SWS, sF1R, tmp, lev + 1, "flag")
        G.post_items.setdefault(("pre", cs - 1), []).append((8, iss))
        def hook(G, lev=lev, chk=chk):
            assert G.published >= min(lev, npair - 1), ("publish order", typ, lev, G.published)
            chk(G)
        G.top_hooks.setdefault(cs, []).append(hook)
        G.post_items.setdefault(("pre", cs), []).extend(hload_items(typ, lev))
    G.post_items.setdefault(nP1 - 3, []).extend(setup_P2_addr())

def main():
    G = Gen()
    prologue(G)
    e = G.e
    st = {t: plan(t) for t in "AB"}
    seq = {t: alloc_seq(t, st[t]) for t in "AB"}
    hgs = {t: build_hgs(t, st[t]) for t in "AB"}
    if not OPT["phase1_only"]: nonce_store(G)
    for it in try_alloc(G, "A", st["A"], seq["A"], 5): it[1](G)
    prologue2(G)
    e.wait_ds_token(init_progress(G))
    e.wait_vm_token(max(G.unit_tok[(0, ui)] for ui in range(3)))
    e.barrier()
    G.certified = 0
    G.stamp()
    if not OPT["phase1_only"]:
        iss, chk = poll(G, SDBG, 0, ACC[1] + 14, 0, "dbg")
        G.post_items.setdefault(("pre", 6), []).append((0, iss))
        G.top_hooks.setdefault(8, []).append(chk)
        G.post_items.setdefault(9, []).extend(setup_F_voffset())
    issue_hg_reads(G, hgs["A"], 2)
    emit_reads(G, 100)
    run_stages(G, "A", st["A"], seq["A"], hgs["A"], 0, 9)
    G.stamp()
    ncommon = 11
    run_stages(G, "A", st["A"], seq["A"], hgs["A"], 9, ncommon)
    assert seq["A"][:G.next_alloc] == seq["B"][:G.next_alloc] and all(st["A"][u[0]] == st["B"][u[0]] for u in seq["A"][:G.next_alloc])
    S_(e, "s_cmp_ge_u32 s%d, 2" % sNQ, S(sNQ), ["scc"])
    e.raw("s_cbranch_scc1 L_typeB"); e.pos += 1
    txt = e.text()
    for typ in "AB":
        Gx = G.fork(typ)
        npair = 4 if typ == "A" else 5
        nP1 = 9 + 3 * (npair - 1)
        if not OPT["phase1_only"]: schedule_polls(Gx, typ, st[typ])
        run_stages(Gx, typ, st[typ], seq[typ], hgs[typ], ncommon, nP1)
        Gx.stamp()
        if OPT["phase1_only"]:
            for h in Gx.top_hooks.pop(nP1, []): h(Gx)
            Gx.e.barrier()
            Gx.q = Gx.q + Gx.post_items.pop(nP1 - 1, []) + Gx.post_items.pop(nP1, [])
        else:
            run_stages(Gx, typ, st[typ], seq[typ], hgs[typ], nP1, nP1 + 9)
            Gx.stamp()
            run_stages(Gx, typ, st[typ], seq[typ], hgs[typ], nP1 + 9, nP1 + 12)
            Gx.stamp()
            final(Gx, typ, st[typ])
        finish(Gx)
        assert not Gx.top_hooks and not Gx.post_items, (Gx.top_hooks.keys(), Gx.post_items.keys())
        print(typ, Gx.e.stats, file=sys.stderr)
        if typ == "B": txt += "L_typeB:\n"
        txt += Gx.e.text()
    txt += "L_end:\n"
    out = file_text(["; @launch grid=(256,1,1) block=(512,1,1) lds=%d" % LDS_BYTES], [(KNAME, txt, 256, 102, 256)])
    open(sys.argv[1], "w").write(out)

if __name__ == "__main__":
    main()
```

```python
import sys, math, struct
from em16 import *
from asmlib import file_text

KNAME = "standalone__mixer_channel_mlp__prompt_kernel"
OPT = dict(phase1_only=0, stamps=0, rate=12, rot=1, nogelu=0, nocs=0, pf=1, spin=200000, nobar=0, nodma=0, nord=0, split=0, kchk=1, rdfast=1, ststamp=0, prio=0, vbudget=240, vpre=40, dmastep=6, fine=0, dmagap=7, adapt=1, trace=0, tr0=9, tr1=99, th=0, tw1=0, tw2=8, tw2n=6, hgap=3, early=1, hdbg=0, pubd=2, pub2=2, n0=2, n1=2, xla=3, rotm=0, fsleep=4, wla=7, pla=7, nopoll=0, nost=0, ladder=1, micro=1)
for a in sys.argv[2:]:
    k, v = a.split("=")
    OPT[k] = int(v)

UNIT = 8192
NU = 19
L_PW = 0
L_SCR = 512
L_CS = 1024
L_ST = L_CS + 1024
L_B1 = L_ST + 2048
L_B2 = L_B1 + 1024
RING0 = UNIT
LDS_BYTES = (NU + 1) * UNIT
WS_PART = 0x1200000
WS_F1 = 0x2800000
WS_F2 = WS_F1 + 0x40000
WS_TS = 0x3000000
C0 = -2.0 * math.sqrt(2.0 / math.pi) * math.log2(math.e)
C1 = C0 * 0.044715
def f2u(x): return struct.unpack("<I", struct.pack("<f", x))[0]

SX, SW1, SW2, SWS, SOUT, SDBG, SB1, SB2 = 4, 8, 12, 16, 20, 24, 28, 32
sW, sTG, sG, sM, sKQ, sNQ, sWB = 36, 37, 38, 39, 40, 41, 42
sDBB = 43
sKW = 44; sKX = 53
sMK = 54
sT0, sT1 = 62, 63
sPB, sHB, sCSW, sCSR = 64, 65, 66, 67
sW2 = 68; sHL = 72
sPS, sLB, sSPIN, sB1A = 76, 77, 78, 79
sCOL = 80
sF1R, sF2R = 2, 3
sTS = 84; NSTAMP = 9
sWM = 98
sGM = 53
sD0, sD1, sH0 = 56, 57, 53
sE = 96
sNZ = 80
vA = 1
vDW, vDX, vDH = 5, 6, 7
vDF = vDX
vBC = 8
vT = 12
vK = 16
vAC = [22, 96]
AFR = 24; NHG = 3
ACC = [48, 64]
HOWN = 80
vONES = 88
vCS = 92
vX0, vX1 = 98, 99
vL16 = 100
vP2 = [5, 101, 102, 103]
vXA = [101, 102]
vQ = 104
vSY1 = 99
XF = 112
STG = [HOWN, HOWN + 4]
STS = [vQ, vQ + 4]
vTMP = ACC[1]

def X(c, kp, b): return XF + 16 * c + 8 * b + 4 * kp

class Gen:
    def __init__(self):
        self.e = Em()
        self.base = {}
        self.q = []
        self.credit = 0
        self.hg_issued = 0
        self.hgbuf = {}
        self.nbuf = 0
        self.unit_tok = {}
        self.unit_pos = {}
        self.free = list(range(1, NU + 1))
        self.next_alloc = 0
        self.nstamp = 0
        self.top_hooks = {}
        self.post_items = {}
        self.certified = -1
        self.nl = 0
        self.pub_pending = []
        self.published = -1
        self.misc = {}
        self.tag = ""
    def fork(self, tag):
        import copy
        g = Gen()
        g.e = self.e.fork()
        for k in ("base", "hgbuf", "unit_tok", "unit_pos", "misc"):
            setattr(g, k, dict(getattr(self, k)))
        for k in ("q", "free", "pub_pending"):
            setattr(g, k, list(getattr(self, k)))
        for k in ("credit", "hg_issued", "nbuf", "next_alloc", "nstamp", "certified", "nl", "published"):
            setattr(g, k, getattr(self, k))
        g.top_hooks = {k: list(v) for k, v in self.top_hooks.items()}
        g.post_items = {k: list(v) for k, v in self.post_items.items()}
        g.tag = tag
        return g
    def newlabel(self, p):
        self.nl += 1
        return "L%s_%s%d" % (self.tag, p, self.nl)
    def stamp(self, st=False):
        if OPT["ststamp"] and not st and self.nstamp > 0: return
        if OPT["stamps"] in (1, 3) and self.nstamp < NSTAMP:
            self.e.raw("s_memtime s[94:95]" if OPT["stamps"] == 1 else "s_memrealtime s[94:95]")
            self.e.pos += 1
            self.e._wait(lgkm=0)
            self.e.raw("s_mov_b32 s%d, s94" % (sTS + self.nstamp))
            self.nstamp += 1
    def trace(self, tmp):
        if not OPT["trace"]: return
        i = self.misc.get("ntrace", 0)
        assert i < 63
        self.misc["ntrace"] = i + 1
        e = self.e
        e.raw("s_memtime s[94:95]"); e.pos += 1
        e._wait(lgkm=0)
        e.valu("v_mov_b32 v%d, s94" % tmp, [], V(tmp))
        S_(e, "s_mov_b64 exec, %s" % sr(sWM, 2), S(sWM, 2), ["exec"])
        e.ins("ds_write_b32 v%d, v%d offset:%d" % (vL16, tmp, 6144 + (i // 4) * 128 + (i % 4) * 4), "dswrite", V(vL16) + V(tmp), [])
        S_(e, "s_mov_b64 exec, -1", [], ["exec"])
    def off(self, reg, const):
        b = self.base.get(reg, 0)
        if not (0 <= const - b <= 65535 - 16):
            nb = (const // UNIT) * UNIT
            d = (nb - b) & 0xffffffff
            self.e.valu("v_add_u32 v%d, 0x%x, v%d" % (reg, d, reg), V(reg), V(reg))
            self.credit -= 4
            self.base[reg] = nb
            b = nb
        return const - b
    def trread(self, dst, reg, const):
        o = self.off(reg, const)
        return self.e.ins("ds_read_b64_tr_b16 %s, v%d offset:%d" % (vr(dst, 2), reg, o), "dsread", V(reg), V(dst, 2))
    def fill(self):
        rate = OPT["rate"]
        dl = self.misc.get("deadline")
        if OPT["adapt"] and dl is not None:
            left = dl - self.misc.get("mcount", 0)
            qc = sum(it[0] if it[0] != "delay" else 0 for it in self.q)
            nd = sum(it[1] for it in self.q if it[0] == "delay")
            rate = qc / max(left - nd - 2, 1) + 0.05
            rate = max(rate, 4.0)
        self.credit = min(self.credit + rate, max(rate + 4, 8))
        nother = 0
        while self.q:
            it = self.q[0]
            if it[0] == "delay":
                if it[1] <= 1: self.q.pop(0)
                else: self.q[0] = ("delay", it[1] - 1)
                return
            cost, fn = it[0], it[1]
            if cost == 0:
                if nother >= 2: return
                nother += 1
            elif cost > self.credit:
                return
            self.q.pop(0)
            self.credit -= cost
            fn(self)
    def drain(self):
        while self.q:
            it = self.q.pop(0)
            if it[0] != "delay": it[1](self)
    def dma(self, lds_const, voff, srdreg, soff):
        e = self.e
        if OPT["nodma"] and self.misc.get("cur_stage", 0) > 5:
            fl = self.misc.pop("dma_filler", None)
            if fl: fl()
            return 0
        e.salu("s_add_u32 m0, s%d, %d" % (sWB, lds_const), S(sWB), ["m0"])
        fl = self.misc.pop("dma_filler", None)
        if fl: fl()
        return e.ins("buffer_load_dwordx4 v%d, %s, s%d offen lds" % (voff, sr(srdreg, 4), soff), "dma",
                     V(voff) + S(srdreg, 4) + S(soff) + ["m0"], [])

def VA(text, rd, wr): return (4, lambda G: G.e.valu(text, rd, wr))
def TR(text, rd, wr): return (8, lambda G: G.e.trans(text, rd, wr))
def OT(fn): return (0, fn)

def S_(e, text, rd=(), wr=()): e.salu(text, rd, wr)

sROT = 81
sXB = 82

def srd(e, d, p, nbytes):
    S_(e, "s_mov_b32 s%d, s%d" % (d, p), [], S(d))
    S_(e, "s_mov_b32 s%d, s%d" % (d + 1, p + 1), [], S(d + 1))
    S_(e, "s_mov_b32 s%d, 0x%x" % (d + 2, nbytes), [], S(d + 2))
    S_(e, "s_mov_b32 s%d, 0x20000" % (d + 3), [], S(d + 3))

def chunk_entry(G, c):
    if c in G.misc.get("cent", ()): return
    G.misc["cent"] = G.misc.get("cent", frozenset()) | {c}
    e = G.e
    if c > 0:
        S_(e, "s_add_u32 s%d, s%d, 1" % (sROT, sROT), S(sROT), S(sROT))
        S_(e, "s_cmp_eq_u32 s%d, 9" % sROT, S(sROT), ["scc"])
        S_(e, "s_cselect_b32 s%d, 0, s%d" % (sROT, sROT), S(sROT), S(sROT))
    S_(e, "s_mul_i32 s%d, s%d, %d" % (sKW + c, sROT, 64 * 9216), S(sROT), S(sKW + c))
    S_(e, "s_lshl_b32 s%d, s%d, 7" % (sKX + c, sROT), S(sROT), S(sKX + c))
    S_(e, "s_add_u32 s%d, s%d, s%d" % (sKX + c, sKX + c, sXB), S(sKX + c) + S(sXB), S(sKX + c))

def prologue(G):
    e = G.e
    e.raw("s_cmp_ge_u32 s2, 256"); e.raw("s_cbranch_scc1 L_end")
    e.raw("s_load_dwordx16 s[64:79], s[0:1], 0")
    if OPT["stamps"]:
        e.raw("s_memrealtime s[100:101]")
    if OPT["trace"]: e.raw("s_memtime s[92:93]")
    e.raw("s_memrealtime s[%d:%d]" % (sE, sE + 1))
    e.valu("v_lshrrev_b32 v1, 6, v0", V(0), V(1))
    e.valu("v_and_b32 v0, 63, v0", V(0), V(0))
    e.ins("v_readfirstlane_b32 s%d, v1" % sW, "readlane", V(1), S(sW))
    S_(e, "s_and_b32 s%d, s2, 3" % sKQ, [], S(sKQ))
    S_(e, "s_lshr_b32 s%d, s2, 3" % sT0, [], S(sT0))
    S_(e, "s_and_b32 s%d, s%d, 3" % (sNQ, sT0), S(sT0), S(sNQ))
    S_(e, "s_lshr_b32 s%d, s%d, 2" % (sT0, sT0), S(sT0), S(sT0))
    S_(e, "s_lshl_b32 s%d, s2, 1" % sM, [], S(sM))
    S_(e, "s_and_b32 s%d, s%d, 8" % (sM, sM), S(sM), S(sM))
    S_(e, "s_add_u32 s%d, s%d, s%d" % (sM, sM, sT0), S(sM) + S(sT0), S(sM))
    S_(e, "s_lshl_b32 s%d, s%d, 10" % (sWB, sW), S(sW), S(sWB))
    if OPT["rot"]:
        S_(e, "s_lshl1_add_u32 s%d, s%d, s%d" % (sROT, sNQ, sT0), S(sNQ) + S(sT0), S(sROT))
        if OPT["rotm"]:
            S_(e, "s_lshr_b32 s%d, s%d, 1" % (sT1, sNQ), S(sNQ), S(sT1))
            S_(e, "s_add_u32 s%d, s%d, s%d" % (sROT, sROT, sT1), S(sROT) + S(sT1), S(sROT))
        S_(e, "s_sub_u32 s%d, s%d, 9" % (sT0, sROT), S(sROT), S(sT0))
        S_(e, "s_cmp_ge_u32 s%d, 9" % sROT, S(sROT), ["scc"])
        S_(e, "s_cselect_b32 s%d, s%d, s%d" % (sROT, sT0, sROT), S(sT0) + S(sROT), S(sROT))
    else:
        S_(e, "s_mov_b32 s%d, 0" % sROT, [], S(sROT))
    S_(e, "s_mul_i32 s%d, s%d, %d" % (sXB, sM, 128 * 1152), S(sM), S(sXB))
    chunk_entry(G, 0)
    t = vTMP
    e.valu("v_lshrrev_b32 v%d, 3, v0" % t, V(0), V(t))
    e.valu("v_and_b32 v%d, 7, v0" % (t + 1), V(0), V(t + 1))
    e.valu("v_lshrrev_b32 v%d, 1, v%d" % (t + 2, t), V(t), V(t + 2))
    S_(e, "s_and_b32 s%d, s%d, 1" % (sT0, sW), S(sW), S(sT0))
    S_(e, "s_lshl_b32 s%d, s%d, 2" % (sT1, sT0), S(sT0), S(sT1))
    e.valu("v_or_b32 v%d, s%d, v%d" % (t + 3, sT1, t + 2), S(sT1) + V(t + 2), V(t + 3))
    e.valu("v_xor_b32 v%d, v%d, v%d" % (t + 3, t + 3, t + 1), V(t + 3) + V(t + 1), V(t + 3))
    S_(e, "s_lshl_b32 s%d, s%d, 3" % (sT1, sW), S(sW), S(sT1))
    e.valu("v_add_u32 v%d, s%d, v%d" % (t + 4, sT1, t), S(sT1) + V(t), V(t + 4))
    e.valu("v_mul_u32_u24 v%d, 1152, v%d" % (vDX, t + 4), V(t + 4), V(vDX))
    e.valu("v_lshl_add_u32 v%d, v%d, 4, v%d" % (vDX, t + 3, vDX), V(t + 3) + V(vDX), V(vDX))
    e.valu("v_bfe_u32 v%d, v0, 2, 3" % t, V(0), V(t))
    e.valu("v_add_u32 v%d, s%d, v%d" % (t, sT1, t), S(sT1) + V(t), V(t))
    e.valu("v_mul_u32_u24 v%d, 9216, v%d" % (vDW, t), V(t), V(vDW))
    e.valu("v_lshrrev_b32 v%d, 5, v0" % (t + 1), V(0), V(t + 1))
    e.valu("v_lshl_add_u32 v%d, v%d, 6, v%d" % (vDW, t + 1, vDW), V(t + 1) + V(vDW), V(vDW))
    S_(e, "s_lshl_b32 s%d, s%d, 1" % (sT0, sT0), S(sT0), S(sT0))
    e.valu("v_and_b32 v%d, 3, v0" % (t + 2), V(0), V(t + 2))
    e.valu("v_xor_b32 v%d, s%d, v%d" % (t + 2, sT0, t + 2), S(sT0) + V(t + 2), V(t + 2))
    e.valu("v_lshl_add_u32 v%d, v%d, 4, v%d" % (vDW, t + 2, vDW), V(t + 2) + V(vDW), V(vDW))
    S_(e, "s_cmp_eq_u32 s%d, 3" % sNQ, S(sNQ), ["scc"])
    S_(e, "s_cselect_b32 s%d, 1, 0" % sT0, [], S(sT0))
    S_(e, "s_lshl2_add_u32 s3, s%d, s%d" % (sNQ, sT0), S(sNQ) + S(sT0), S(3))
    S_(e, "s_mul_i32 s%d, s%d, 5" % (sDBB, sNQ), S(sNQ), S(sDBB))
    S_(e, "s_sub_u32 s%d, s%d, s%d" % (sDBB, sDBB, sT0), S(sDBB) + S(sT0), S(sDBB))
    S_(e, "s_lshl_b32 s%d, s%d, 6" % (sDBB, sDBB), S(sDBB), S(sDBB))
    S_(e, "s_mul_i32 s%d, s%d, 2304" % (sT0, sKQ), S(sKQ), S(sT0))
    S_(e, "s_lshl_b32 s%d, s3, 7" % sT1, S(3), S(sT1))
    S_(e, "s_add_u32 s83, s%d, s%d" % (sT0, sT1), S(sT0) + S(sT1), S(83))
    e.valu("v_add_u32 v%d, s83, v%d" % (vDW, vDW), S(83) + V(vDW), V(vDW))
    S_(e, "s_mov_b32 s%d, 0x%x" % (SX + 2, 2048 * 576 * 2), [], S(SX + 2))
    S_(e, "s_mov_b32 s%d, 0x20000" % (SX + 3), [], S(SX + 3))
    S_(e, "s_mov_b32 s%d, 0x%x" % (SW1 + 2, 576 * 4608 * 2), [], S(SW1 + 2))
    S_(e, "s_mov_b32 s%d, 0x20000" % (SW1 + 3), [], S(SW1 + 3))
    e.raw("s_waitcnt lgkmcnt(0)"); e.pos += 1
    S_(e, "s_mov_b64 %s, s[64:65]" % sr(SX, 2), [], S(SX, 2))
    S_(e, "s_mov_b64 %s, s[66:67]" % sr(SW1, 2), [], S(SW1, 2))
    G.stamp()

def prologue_b(G):
    e = G.e
    t = vTMP
    S_(e, "s_and_b32 s%d, s%d, 3" % (sTG, sW), S(sW), S(sTG))
    S_(e, "s_lshr_b32 s%d, s%d, 2" % (sG, sW), S(sW), S(sG))
    e.valu("v_lshlrev_b32 v%d, 4, v0" % vL16, V(0), V(vL16))
    sRHO = sWM
    S_(e, "s_and_b32 s%d, s%d, 1" % (sRHO, sTG), S(sTG), S(sRHO))
    S_(e, "s_xor_b32 s%d, s%d, s%d" % (sRHO, sRHO, sG), S(sRHO) + S(sG), S(sRHO))
    e.valu("v_lshrrev_b32 v%d, 4, v0" % t, V(0), V(t))
    e.valu("v_bfe_u32 v%d, v0, 2, 2" % (t + 1), V(0), V(t + 1))
    e.valu("v_and_b32 v%d, 3, v0" % (t + 2), V(0), V(t + 2))
    e.valu("v_and_b32 v%d, 1, v%d" % (t + 3, t), V(t), V(t + 3))
    e.valu("v_lshlrev_b32 v%d, 10, v%d" % (t + 4, t), V(t), V(t + 4))
    e.valu("v_lshl_add_u32 v%d, v%d, 6, v%d" % (t + 4, t + 1, t + 4), V(t + 1) + V(t + 4), V(t + 4))
    e.valu("v_lshl_add_u32 v%d, v%d, 3, v%d" % (t + 4, t + 2, t + 4), V(t + 2) + V(t + 4), V(t + 4))
    S_(e, "s_lshr_b32 s%d, s%d, 1" % (sT0, sTG), S(sTG), S(sT0))
    e.valu("v_xor_b32 v%d, s%d, v%d" % (t + 3, sT0, t + 3), S(sT0) + V(t + 3), V(t + 3))
    e.valu("v_lshl_add_u32 v%d, v%d, 5, v%d" % (t + 5, t + 3, t + 4), V(t + 3) + V(t + 4), V(t + 5))
    e.valu("v_xor_b32 v%d, 32, v%d" % (t + 6, t + 5), V(t + 5), V(t + 6))
    for kp in range(2):
        S_(e, "s_xor_b32 s%d, s%d, %d" % (sT0, sRHO, kp), S(sRHO), S(sT0))
        S_(e, "s_lshl_b32 s%d, s%d, 12" % (sT0, sT0), S(sT0), S(sT0))
        S_(e, "s_lshl_b32 s%d, s%d, 9" % (sT1, sG), S(sG), S(sT1))
        S_(e, "s_add_u32 s%d, s%d, s%d" % (sT0, sT0, sT1), S(sT0) + S(sT1), S(sT0))
        for a in range(2):
            e.valu("v_add_u32 v%d, s%d, v%d" % (vA + 2 * a + kp, sT0, t + 5 + a), S(sT0) + V(t + 5 + a), V(vA + 2 * a + kp))
    e.valu("v_and_b32 v%d, 15, v0" % (t + 1), V(0), V(t + 1))
    e.valu("v_lshrrev_b32 v%d, 1, v%d" % (t + 2, t + 1), V(t + 1), V(t + 2))
    e.valu("v_xor_b32 v%d, v%d, v%d" % (t + 2, t + 2, t), V(t + 2) + V(t), V(t + 2))
    S_(e, "s_lshl_b32 s%d, s%d, 12" % (sT0, sTG), S(sTG), S(sT0))
    e.valu("v_lshlrev_b32 v%d, 7, v%d" % (t + 1, t + 1), V(t + 1), V(t + 1))
    e.valu("v_add_u32 v%d, s%d, v%d" % (t + 1, sT0, t + 1), S(sT0) + V(t + 1), V(t + 1))
    for kp in range(2):
        S_(e, "s_xor_b32 s%d, s%d, %d" % (sT0, sRHO, kp), S(sRHO), S(sT0))
        S_(e, "s_lshl_b32 s%d, s%d, 2" % (sT0, sT0), S(sT0), S(sT0))
        e.valu("v_xor_b32 v%d, s%d, v%d" % (t + 3, sT0, t + 2), S(sT0) + V(t + 2), V(t + 3))
        e.valu("v_lshl_add_u32 v%d, v%d, 4, v%d" % (vXA[kp], t + 3, t + 1), V(t + 3) + V(t + 1), V(vXA[kp]))
    for i in range(4):
        e.valu("v_mov_b32 v%d, 0x3f803f80" % (vONES + i), [], V(vONES + i))
    S_(e, "s_lshl_b64 %s, 1, s%d" % (sr(sWM, 2), sW), S(sW), S(sWM, 2))
    srd(e, SWS, 78, 0x4000000)
    srd(e, SDBG, 76, 256)
    S_(e, "s_or_b32 s%d, s2, s%d" % (sNZ, sW), S(sW), S(sNZ))

def deferred_setup():
    L = []
    def f1(G):
        e = G.e
        srd(e, SB1, 68, 4608 * 2); srd(e, SB2, 72, 576 * 2)
        S_(e, "s_mov_b32 m0, %d" % L_B1, [], ["m0"])
        e.ins("buffer_load_dwordx4 v%d, %s, s83 offen lds" % (vL16, sr(SB1, 4)), "dma", V(vL16) + S(SB1, 4) + S(83) + ["m0"], [])
        S_(e, "s_mov_b32 m0, %d" % L_B2, [], ["m0"])
        G.misc["btok"] = e.ins("buffer_load_dwordx4 v%d, %s, s%d offen lds" % (vL16, sr(SB2, 4), sDBB), "dma", V(vL16) + S(SB2, 4) + S(sDBB) + ["m0"], [])
    L.append(f1)
    def f2(G):
        e = G.e
        srd(e, SW2, 70, 4608 * 576 * 2); srd(e, SOUT, 74, 2048 * 576 * 2)
        S_(e, "s_mov_b32 s%d, s3" % sPB, S(3), S(sPB))
        S_(e, "s_cmp_ge_u32 s%d, 2" % sTG, S(sTG), ["scc"])
        S_(e, "s_cselect_b64 vcc, -1, 0", [], ["vcc"])
    L.append(f2)
    def f3(G):
        e = G.e
        S_(e, "s_lshl2_add_u32 s%d, s%d, s%d" % (sT0, sM, sKQ), S(sM) + S(sKQ), S(sT0))
        S_(e, "s_lshl2_add_u32 s%d, s%d, s%d" % (sT0, sT0, sNQ), S(sT0) + S(sNQ), S(sT0))
        S_(e, "s_lshl_b32 s%d, s%d, 7" % (sT0, sT0), S(sT0), S(sT0))
        S_(e, "s_add_u32 s%d, s%d, 0x%x" % (sF1R, sT0, WS_F1), S(sT0), S(sF1R))
        S_(e, "s_lshl2_add_u32 s%d, s%d, s%d" % (sT0, sM, sNQ), S(sM) + S(sNQ), S(sT0))
        S_(e, "s_lshl2_add_u32 s%d, s%d, s%d" % (sT0, sT0, sKQ), S(sT0) + S(sKQ), S(sT0))
        S_(e, "s_lshl_b32 s%d, s%d, 7" % (sT0, sT0), S(sT0), S(sT0))
        S_(e, "s_add_u32 s%d, s%d, 0x%x" % (sF2R, sT0, WS_F2), S(sT0), S(sF2R))
    L.append(f3)
    def f4(G):
        e = G.e
        S_(e, "s_lshl_b32 s%d, s%d, 8" % (sCSR, sG), S(sG), S(sCSR))
        S_(e, "s_add_u32 s%d, s%d, %d" % (sCSR, sCSR, L_CS), S(sCSR), S(sCSR))
        S_(e, "s_lshl2_add_u32 s%d, s%d, s%d" % (sCSW, sTG, sCSR), S(sTG) + S(sCSR), S(sCSW))
        S_(e, "s_lshr_b32 s%d, s%d, 1" % (sT0, sTG), S(sTG), S(sT0))
        S_(e, "s_lshl3_add_u32 s%d, s%d, s%d" % (sCSR, sT0, sCSR), S(sT0) + S(sCSR), S(sCSR))
        S_(e, "s_lshl1_add_u32 s%d, s%d, s%d" % (sB1A, sG, sT0), S(sG) + S(sT0), S(sB1A))
        S_(e, "s_lshl_b32 s%d, s%d, 5" % (sB1A, sB1A), S(sB1A), S(sB1A))
        S_(e, "s_add_u32 s%d, s%d, %d" % (sB1A, sB1A, L_B1), S(sB1A), S(sB1A))
    L.append(f4)
    def f5(G):
        e = G.e
        S_(e, "s_mul_i32 s%d, s%d, 36" % (sT0, sKQ), S(sKQ), S(sT0))
        S_(e, "s_add_u32 s%d, s%d, s%d" % (sT0, sT0, sG), S(sT0) + S(sG), S(sT0))
        S_(e, "s_mul_i32 s%d, s%d, 144" % (sT1, sM), S(sM), S(sT1))
        S_(e, "s_add_u32 s%d, s%d, s%d" % (sT0, sT0, sT1), S(sT0) + S(sT1), S(sT0))
        S_(e, "s_lshl2_add_u32 s%d, s%d, s%d" % (sT0, sT0, sTG), S(sT0) + S(sTG), S(sT0))
        S_(e, "s_lshl_b32 s%d, s%d, 11" % (sHB, sT0), S(sT0), S(sHB))
        S_(e, "s_mul_i32 s%d, s%d, %d" % (sPS, sKQ, 1152 * 1152), S(sKQ), S(sPS))
    L.append(f5)
    for k in range(4):
        def f6(G, k=k):
            e = G.e
            n = sT0
            if k == 0: S_(e, "s_mov_b32 s%d, s%d" % (n, sNQ), S(sNQ), S(n))
            elif k == 1: S_(e, "s_xor_b32 s%d, s%d, 1" % (n, sNQ), S(sNQ), S(n))
            else:
                S_(e, "s_xor_b32 s%d, s%d, 2" % (n, sNQ), S(sNQ), S(n))
                S_(e, "s_and_b32 s%d, s%d, 2" % (n, n), S(n), S(n))
                if k == 3: S_(e, "s_add_u32 s%d, s%d, 1" % (n, n), S(n), S(n))
            S_(e, "s_cmp_eq_u32 s%d, 3" % n, S(n), ["scc"])
            S_(e, "s_cselect_b32 s%d, 1, 0" % sT1, [], S(sT1))
            S_(e, "s_lshl2_add_u32 s%d, s%d, s%d" % (n, n, sT1), S(n) + S(sT1), S(n))
            S_(e, "s_lshl_b32 s%d, s%d, 14" % (sHL + k, n), S(n), S(sHL + k))
            S_(e, "s_add_u32 s%d, s%d, s%d" % (sHL + k, sHL + k, sHB), S(sHL + k) + S(sHB), S(sHL + k))
            S_(e, "s_mul_i32 s%d, s%d, %d" % (sW2 + k, n, 64 * 1152), S(n), S(sW2 + k))
            S_(e, "s_add_u32 s%d, s%d, s%d" % (sW2 + k, sW2 + k, sPS), S(sW2 + k) + S(sPS), S(sW2 + k))
            if k == 3: S_(e, "s_mov_b32 s%d, s%d" % (sHB, sHL), S(sHL), S(sHB))
        L.append(f6)
    def f8(G):
        e = G.e
        S_(e, "s_lshl2_add_u32 s%d, s%d, s%d" % (sT0, sM, sNQ), S(sM) + S(sNQ), S(sT0))
        S_(e, "s_mul_i32 s%d, s%d, 160" % (sT0, sT0), S(sT0), S(sT0))
        S_(e, "s_lshl3_add_u32 s%d, s%d, s%d" % (sT0, sTG, sT0), S(sTG) + S(sT0), S(sT0))
        S_(e, "s_add_u32 s%d, s%d, s%d" % (sT0, sT0, sG), S(sT0) + S(sG), S(sT0))
        S_(e, "s_lshl_b32 s%d, s%d, 11" % (sT0, sT0), S(sT0), S(sT0))
        S_(e, "s_add_u32 s%d, s%d, 0x%x" % (sPS, sT0, WS_PART), S(sT0), S(sPS))
    L.append(f8)
    def f9(G):
        e = G.e
        t = vTMP
        e.valu("v_bfe_u32 v%d, v0, 4, 1" % t, V(0), V(t))
        e.valu("v_lshlrev_b32 v%d, 1, v%d" % (t, t), V(t), V(t))
        e.valu("v_and_b32 v%d, 3, v0" % (t + 1), V(0), V(t + 1))
        e.valu("v_xor_b32 v%d, v%d, v%d" % (t, t, t + 1), V(t, 2), V(t))
        S_(e, "s_and_b32 s%d, s%d, 1" % (sT0, sTG), S(sTG), S(sT0))
        S_(e, "s_lshl1_add_u32 s%d, s%d, s%d" % (sT0, sG, sT0), S(sG) + S(sT0), S(sT0))
        S_(e, "s_lshl_b32 s%d, s%d, 4" % (sT0, sT0), S(sT0), S(sT0))
        e.valu("v_lshrrev_b32 v%d, 2, v0" % (t + 1), V(0), V(t + 1))
        e.valu("v_add_u32 v%d, s%d, v%d" % (t + 1, sT0, t + 1), S(sT0) + V(t + 1), V(t + 1))
        e.valu("v_mul_u32_u24 v%d, 1152, v%d" % (vDH, t + 1), V(t + 1), V(vDH))
        e.valu("v_lshl_add_u32 v%d, v%d, 4, v%d" % (vDH, t, vDH), V(t) + V(vDH), V(vDH))
    L.append(f9)
    return [OT(f) for f in L]

def cols_setup(G):
    e = G.e
    assert len(G.misc["cent"]) == 9
    S_(e, "s_cmp_eq_u32 s%d, 1" % sNQ, S(sNQ), ["scc"])
    S_(e, "s_cselect_b32 s%d, 64, 0" % sLB, [], S(sLB))
    S_(e, "s_add_u32 s%d, s%d, 256" % (sCOL + 2, sLB), S(sLB), S(sCOL + 2))
    S_(e, "s_add_u32 s%d, s%d, s%d" % (sLB, sLB, sDBB), S(sLB) + S(sDBB), S(sLB))
    S_(e, "s_xor_b32 s%d, s%d, 2" % (sT0, sKQ), S(sKQ), S(sT0))
    S_(e, "s_and_b32 s%d, s%d, 2" % (sT0, sT0), S(sT0), S(sT0))
    S_(e, "s_lshl_b32 s%d, s%d, 6" % (sT0, sT0), S(sT0), S(sT0))
    S_(e, "s_add_u32 s%d, s%d, s%d" % (sCOL, sT0, sLB), S(sT0) + S(sLB), S(sCOL))
    S_(e, "s_xor_b32 s%d, s%d, 1" % (sT0, sKQ), S(sKQ), S(sT0))
    S_(e, "s_lshl_b32 s%d, s%d, 6" % (sT0, sT0), S(sT0), S(sT0))
    S_(e, "s_add_u32 s%d, s%d, s%d" % (sCOL + 1, sT0, sLB), S(sT0) + S(sLB), S(sCOL + 1))
    S_(e, "s_lshl_b32 s%d, s%d, 6" % (sT0, sKQ), S(sKQ), S(sT0))
    S_(e, "s_add_u32 s%d, s%d, s%d" % (sCOL + 3, sT0, sLB), S(sT0) + S(sLB), S(sCOL + 3))

def dw_block(G, lines, regs=(), sreg=None, wave=0):
    e = G.e
    e._autowait(list(regs))
    e.nop(max(e._need("valu", list(regs), list(regs), "x"), 0))
    lab = G.newlabel("dw")
    e.raw("s_cmp_eq_u32 s%d, %d" % (sW if sreg is None else sreg, wave)); e.raw("s_cbranch_scc0 %s" % lab); e.pos += 2
    for l in lines:
        if l.endswith(":"): e.label(l[:-1])
        else: e.raw(l)
    e.label(lab)
    for r in regs: e.lastw[r] = ("valu", e.pos - 1, None)

def flag_store(G, srdreg, sread, sown, val, tmp):
    dw_block(G, ["s_add_u32 s%d, s%d, %d" % (sT1, sE, val),
                 "v_mov_b32 v%d, s%d" % (tmp, sT1),
                 "v_mov_b32 v%d, s%d" % (tmp + 1, sE + 1),
                 "s_mul_i32 s%d, s%d, 120" % (sT0, sown),
                 "s_sub_u32 s%d, s%d, s%d" % (sT0, sread, sT0),
                 "s_lshl_b32 s%d, s%d, 3" % (sT1, sown),
                 "s_lshl_b32 s%d, 1, s%d" % (sT1, sT1),
                 "s_andn2_b32 exec_lo, 0x01010101, s%d" % sT1,
                 "s_mov_b32 exec_hi, 0",
                 "buffer_store_dwordx2 %s, v%d, %s, s%d offen sc1" % (vr(tmp, 2), vL16, sr(srdreg, 4), sT0),
                 "s_mov_b64 exec, -1"], V(tmp, 2))

def nonce_store(G):
    t = vTMP
    dw_block(G, ["s_and_b32 s%d, s%d, 0xfffffff0" % (sE, sE),
                 "s_or_b32 s%d, s%d, 0x80000000" % (sE + 1, sE + 1),
                 "v_mov_b32 v%d, s%d" % (t, sE),
                 "v_mov_b32 v%d, s%d" % (t + 1, sE + 1),
                 "s_mov_b64 exec, 1",
                 "buffer_store_dwordx2 %s, off, %s, 0 sc1" % (vr(t, 2), sr(SDBG, 4)),
                 "s_mov_b64 exec, -1"], V(t, 2), sreg=sNZ)

def touch(G, vaddr, srdreg, soff, mask_lo, mask_hi):
    e = G.e
    S_(e, "s_mov_b32 m0, %d" % L_SCR, [], ["m0"])
    S_(e, "s_mov_b32 exec_lo, 0x%x" % mask_lo, [], ["exec"])
    S_(e, "s_mov_b32 exec_hi, 0x%x" % mask_hi, [], ["exec"])
    tok = e.ins("buffer_load_dword v%d, %s, s%d offen lds" % (vaddr, sr(srdreg, 4), soff), "dma", V(vaddr) + S(srdreg, 4) + S(soff) + ["m0"], [])
    S_(e, "s_mov_b64 exec, -1", [], ["exec"])
    return tok

def touch_lines(nl):
    m = (1 << nl) - 1
    return ["s_mov_b32 m0, %d" % L_SCR, "s_mov_b32 exec_lo, 0x%x" % (m & 0xffffffff), "s_mov_b32 exec_hi, 0x%x" % (m >> 32)]

def touch_w1_piece(pair, piece, wave):
    t = vX1
    def f(G):
        dw_block(G, ["v_mul_u32_u24 v%d, 9216, v0" % t,
                     "s_and_b32 s%d, s%d, 7" % (sT0, sM),
                     "s_mul_i32 s%d, s%d, %d" % (sT0, sT0, 72 * 9216),
                     "s_mul_i32 s%d, s%d, 2304" % (sT1, sKQ),
                     "s_add_u32 s%d, s%d, s%d" % (sT0, sT0, sT1),
                     "s_lshl_b32 s%d, s%d, 7" % (sT1, sPB),
                     "s_add_u32 s%d, s%d, s%d" % (sT0, sT0, sT1),
                     "s_add_u32 s%d, s%d, %d" % (sT0, sT0, piece * 36 * 9216 + pair * 128)] + touch_lines(36) +
                    ["buffer_load_dword v%d, %s, s%d offen lds" % (t, sr(SW1, 4), sT0), "s_mov_b64 exec, -1"], V(t), wave=wave)
    return OT(f)

def touch_w2_piece(piece, npiece, wave):
    nl = min(-(-324 // npiece), 64)
    t = vX1
    def f(G):
        dw_block(G, ["v_lshlrev_b32 v%d, 7, v0" % t,
                     "s_and_b32 s%d, s%d, 7" % (sT0, sM),
                     "s_lshl2_add_u32 s%d, s%d, s%d" % (sT0, sT0, sNQ),
                     "s_mul_i32 s%d, s%d, %d" % (sT0, sT0, 324 * 128),
                     "s_mul_i32 s%d, s%d, %d" % (sT1, sKQ, 1152 * 1152),
                     "s_add_u32 s%d, s%d, s%d" % (sT0, sT0, sT1),
                     "s_add_u32 s%d, s%d, %d" % (sT0, sT0, piece * nl * 128)] + touch_lines(nl) +
                    ["buffer_load_dword v%d, %s, s%d offen lds" % (t, sr(SW2, 4), sT0), "s_mov_b64 exec, -1"], V(t), wave=wave)
    return OT(f)

def init_progress(G):
    e = G.e
    S_(e, "s_lshl_b64 %s, 1, s%d" % (sr(sWM, 2), sW), S(sW), S(sWM, 2))
    S_(e, "s_mov_b64 exec, %s" % sr(sWM, 2), S(sWM, 2), ["exec"])
    tok = e.ins("ds_write_b32 v%d, v%d offset:%d" % (vL16, vX0, L_PW), "dswrite", V(vL16) + V(vX0), [])
    S_(e, "s_lshl_b32 s%d, s%d, 2" % (sT0, sG), S(sG), S(sT0))
    S_(e, "s_lshl_b32 s%d, 15, s%d" % (sGM, sT0), S(sT0), S(sGM))
    S_(e, "s_mov_b64 exec, -1", [], ["exec"])
    return tok

def arrive(G, s, tmp):
    e = G.e
    e.valu("v_mov_b32 v%d, %d" % (tmp, s + 1), [], V(tmp))
    S_(e, "s_mov_b64 exec, %s" % sr(sWM, 2), S(sWM, 2), ["exec"])
    e.ins("ds_write_b32 v%d, v%d offset:%d" % (vL16, tmp, L_PW), "dswrite", V(vL16) + V(tmp), [])
    S_(e, "s_mov_b64 exec, -1", [], ["exec"])

def sync_issue(G, tmp):
    G.e.ins("ds_read_b32 v%d, v%d offset:%d" % (tmp, vL16, L_PW), "dsread", V(vL16), V(tmp))

def sync_check(G, s, tmp, sameg=False):
    e = G.e
    pr = sMK + 6
    pr2 = sMK + 4
    lok = G.newlabel("bk"); lsp = G.newlabel("bs")
    def cond(raw):
        if raw:
            e.raw("v_cmp_gt_u32 %s, %d, v%d" % (sr(pr, 2), s + 1, tmp))
            if sameg: e.raw("v_cmp_gt_u32 %s, %d, v%d" % (sr(pr2, 2), s + 2, tmp))
            e.raw("s_nop 3")
            if sameg:
                e.raw("s_and_b32 s%d, s%d, s%d" % (pr2, pr2, sGM)); e.raw("s_or_b32 s%d, s%d, s%d" % (pr, pr, pr2))
            e.raw("s_and_b32 s%d, s%d, 0xff" % (pr, pr))
        else:
            e.valu("v_cmp_gt_u32 %s, %d, v%d" % (sr(pr, 2), s + 1, tmp), V(tmp), S(pr, 2))
            if sameg:
                e.valu("v_cmp_gt_u32 %s, %d, v%d" % (sr(pr2, 2), s + 2, tmp), V(tmp), S(pr2, 2))
                S_(e, "s_and_b32 s%d, s%d, s%d" % (pr2, pr2, sGM), S(pr2) + S(sGM), S(pr2))
                S_(e, "s_or_b32 s%d, s%d, s%d" % (pr, pr, pr2), S(pr) + S(pr2), S(pr))
            S_(e, "s_and_b32 s%d, s%d, 0xff" % (pr, pr), S(pr), S(pr) + ["scc"])
    cond(False)
    e.raw("s_cbranch_scc0 %s" % lok); e.pos += 1
    e.label(lsp)
    e.raw("s_sleep 1")
    e.raw("ds_read_b32 v%d, v%d offset:%d" % (tmp, vL16, L_PW))
    e.raw("s_waitcnt lgkmcnt(0)")
    cond(True)
    e.raw("s_cbranch_scc1 %s" % lsp)
    e.label(lok)

def setup_F_voffset():
    a, b = vQ + 2, vQ + 3
    L = []
    L.append(VA("v_bfe_u32 v%d, v0, 2, 3" % a, V(0), V(a)))
    L.append(VA("v_lshl_add_u32 v%d, s%d, 3, v%d" % (a, sW, a), S(sW) + V(a), V(a)))
    L.append(VA("v_mul_u32_u24 v%d, 1152, v%d" % (vDF, a), V(a), V(vDF)))
    L.append(VA("v_lshrrev_b32 v%d, 5, v0" % a, V(0), V(a)))
    L.append(VA("v_lshl_add_u32 v%d, v%d, 6, v%d" % (vDF, a, vDF), V(a) + V(vDF), V(vDF)))
    L.append(VA("v_bfe_u32 v%d, v0, 4, 1" % a, V(0), V(a)))
    L.append(VA("v_lshlrev_b32 v%d, 1, v%d" % (a, a), V(a), V(a)))
    L.append(VA("v_and_b32 v%d, 3, v0" % b, V(0), V(b)))
    L.append(VA("v_xor_b32 v%d, v%d, v%d" % (a, a, b), V(a) + V(b), V(a)))
    L.append(VA("v_lshl_add_u32 v%d, v%d, 4, v%d" % (vDF, a, vDF), V(a) + V(vDF), V(vDF)))
    L.append(OT(lambda G: G.misc.__setitem__("F_ready", 1)))
    return L

def setup_P2_addr():
    a, b = vQ + 2, vQ + 3
    F0, F1, H0, H1 = vP2
    L = []
    L.append(VA("v_bfe_u32 v%d, v0, 2, 3" % a, V(0), V(a)))
    L.append(VA("v_lshlrev_b32 v%d, 6, v%d" % (a, a), V(a), V(a)))
    L.append(VA("v_and_b32 v%d, 3, v0" % b, V(0), V(b)))
    L.append(VA("v_lshl_add_u32 v%d, v%d, 3, v%d" % (a, b, a), V(a) + V(b), V(a)))
    L.append(VA("v_bfe_u32 v%d, v0, 4, 1" % b, V(0), V(b)))
    L.append(VA("v_xor_b32 v%d, s%d, v%d" % (b, sG, b), S(sG) + V(b), V(b)))
    L.append(VA("v_lshl_add_u32 v%d, v%d, 5, v%d" % (a, b, a), V(a) + V(b), V(a)))
    L.append(VA("v_lshl_add_u32 v%d, s%d, 12, v%d" % (a, sG, a), S(sG) + V(a), V(a)))
    L.append(VA("v_lshrrev_b32 v%d, 5, v0" % b, V(0), V(b)))
    def chk(G): assert G.misc.get("w1_left", 1) == 0, "w1 DMAs outstanding"
    L.append(OT(chk))
    L.append(VA("v_lshl_add_u32 v%d, v%d, 10, v%d" % (F0, b, a), V(a) + V(b), V(F0)))
    L.append(VA("v_lshl_add_u32 v%d, v%d, 9, v%d" % (H0, b, a), V(a) + V(b), V(H0)))
    L.append(VA("v_xor_b32 v%d, 32, v%d" % (F1, F0), V(F0), V(F1)))
    L.append(VA("v_xor_b32 v%d, 32, v%d" % (H1, H0), V(H0), V(H1)))
    def rb(G):
        for r in vP2: G.base[r] = 0
    L.append(OT(rb))
    return L

def korder(typ):
    if typ == "A":
        o = [(0, 2)] + [(s, 0) for s in (0, 1, 2, 3)] + [(s, 1) for s in (0, 1, 2, 3)] + [(0, 3)] + \
            [(s, 2) for s in (1, 2, 3)] + [(s, 3) for s in (1, 2, 3)] + [(2, 4), (3, 4)]
    else:
        o = [(0, 3)] + [(s, 0) for s in (0, 1, 2, 3)] + [(s, 1) for s in (0, 1, 2, 3)] + [(0, 4)] + \
            [(s, 2) for s in (0, 1, 2, 3)] + [(s, 3) for s in (1, 2, 3)] + [(1, 4)]
    assert len(o) == 18
    regs = {}
    blk = 0
    for i, k in enumerate(o):
        if i == 0: regs[k] = HOWN
        else:
            regs[k] = XF + 8 * blk; blk += 1
    return o, regs

def plan(typ):
    npair = 4 if typ == "A" else 5
    stages = []
    for c in range(9):
        stages.append(dict(kind="X", c=c, units=[("x", c, 0), ("x", c, 1), ("w1", 0, c)]))
    for p in range(1, npair):
        for j in range(3):
            stages.append(dict(kind="W", p=p, j=j, units=[("w1", p, 3 * j + i) for i in range(3)]))
    if not OPT["phase1_only"]:
        for j in range(9):
            u = [("F", 2 * j), ("F", 2 * j + 1), ("H", 1, j)]
            if typ == "A": u.append(("H", 2, j))
            stages.append(dict(kind="PA", j=j, units=u))
        for j in range(3):
            stages.append(dict(kind="PB", j=j, units=[("H", 3, 3 * j + i) for i in range(3)]))
    return stages

def p2_quads(typ):
    npair = 4 if typ == "A" else 5
    last = ACC[(npair - 1) % 2]; other = ACC[npair % 2]
    early = [other + 4 * i for i in range(4)] + [vQ, vQ + 4, XF + 136, XF + 140, vONES, vCS]
    late = [last + 4 * i for i in range(4)] + [vBC, 96]
    allq = early + late
    nts = 4 if typ == "A" else 3
    d = {}
    i = 0
    for ts in range(nts):
        for a in range(2):
            for b in range(2):
                d[(ts, a, b)] = allq[i]; i += 1
    return d

def build_hgs(typ, stages):
    hgs = []
    ko, hreg = korder(typ)
    quads = p2_quads(typ)
    nts = 4 if typ == "A" else 3
    for s, st in enumerate(stages):
        if st["kind"] in ("X", "W"):
            p = 0 if st["kind"] == "X" else st["p"]
            chunks = [(st["c"], 2)] if st["kind"] == "X" else [(3 * st["j"] + i, i) for i in range(3)]
            for (c, ui) in chunks:
                for a in range(2):
                    reads = []
                    for kp in range(2):
                        for u in range(2):
                            reads.append((4 * kp + 2 * u, vA + 2 * a + kp, (s, ui), u * 256))
                    mf = []
                    for b in range(2):
                        acc = ACC[p % 2] + 8 * a + 4 * b
                        for kp in range(2):
                            mf.append((acc, 4 * kp, X(c, kp, b), c == 0 and kp == 0))
                    hg = dict(stage=s, reads=reads, mf=mf, p1=(p, c, a), last=(c == 8 and a == 1))
                    if st["kind"] == "X" and a == 0:
                        hg["xreads"] = [(X(c, kp, b), vXA[kp], (s, 0), b * 2048) for b in range(2) for kp in range(2)]
                    hgs.append(hg)
        elif st["kind"] == "PA":
            j = st["j"]
            order = [(ts, a) for ts in range(nts) for a in range(2)]
            if j == 8: order = [(ts, 1) for ts in range(nts)] + [(ts, 0) for ts in range(nts)]
            for (ts, a) in order:
                if True:
                    reads = []
                    for ki in range(2):
                        for u in range(2):
                            if ts < 2: reads.append((4 * ki + 2 * u, vP2[a], (s, ki), u * 2048 + ts * 512))
                            else: reads.append((4 * ki + 2 * u, vP2[2 + a], (s, ts), ki * 2048 + u * 1024))
                    mf = []
                    for b in range(2):
                        for ki in range(2):
                            mf.append((quads[(ts, a, b)], 4 * ki, hreg[ko[2 * j + ki]] + 4 * b, j == 0 and ki == 0))
                    hgs.append(dict(stage=s, reads=reads, mf=mf, lastA=(j == 8 and (ts, a) == order[-1]), hand=(ts if (j == 8 and a == 1) else None)))
        elif st["kind"] == "PB":
            j = st["j"]
            for i in range(3):
                jj = 3 * j + i
                for a in range(2):
                    reads = []
                    for ki in range(2):
                        for u in range(2):
                            reads.append((4 * ki + 2 * u, vP2[2 + a], (s, i), ki * 2048 + u * 1024))
                    mf = []
                    for b in range(2):
                        acc = quads[(a, 1, b)]
                        for ki in range(2):
                            mf.append((acc, 4 * ki, hreg[ko[2 * jj + ki]] + 4 * b, jj == 0 and ki == 0))
                    hgs.append(dict(stage=s, reads=reads, mf=mf, lastB=(jj == 8 and a == 1)))
    return hgs

def alloc_seq(typ, stages):
    seq = []
    for s, st in enumerate(stages):
        if st["kind"] == "PB" and st["j"] == 1:
            for i in range(8 if typ == "A" else 6): seq.append(("HAND", i))
        for ui in range(len(st["units"])): seq.append((s, ui))
    if not OPT["phase1_only"]:
        for i in range(2): seq.append(("HAND2", i))
    return seq

def unit_dma_item(typ, stages, uid):
    s, ui = uid
    ud = stages[s]["units"][ui]
    ko, _ = korder(typ)
    def f(G):
        e = G.e
        base = G.unit_pos[uid] * UNIT
        if ud[0] == "x":
            c, half = ud[1], ud[2]
            chunk_entry(G, c)
            if half == 0: so = sKX + c
            else:
                S_(e, "s_add_u32 s%d, s%d, %d" % (sT0, sKX + c, 64 * 1152), S(sKX + c), S(sT0)); so = sT0
            G.unit_tok[uid] = G.dma(base, vDX, SX, so)
        elif ud[0] == "w1":
            p, c = ud[1], ud[2]
            if p > 0 and c == 0:
                e.valu("v_add_u32 v%d, 128, v%d" % (vDW, vDW), V(vDW), V(vDW))
            G.unit_tok[uid] = G.dma(base, vDW, SW1, sKW + c)
            G.misc["w1_left"] = 0 if (p == (3 if typ == "A" else 4) and c == 8) else 1
        elif ud[0] in ("F", "H"):
            G.unit_tok[uid] = G.dma(base, vDF if ud[0] == "F" else vDH, SW2, sD0)
    pre = []
    def SA(text, rd, wr): pre.append(lambda G: S_(G.e, text, rd, wr))
    if ud[0] == "F":
        src, lev = ko[ud[1]]
        def chk(G): assert G.misc.get("F_ready")
        SA("s_add_u32 s%d, s%d, s%d" % (sD0, sW2 + src, sCOL), S(sW2 + src) + S(sCOL), S(sD0))
        if lev: SA("s_add_u32 s%d, s%d, %d" % (sD0, sD0, lev * 64 * 1152), S(sD0), S(sD0))
    elif ud[0] == "H":
        role, j = ud[1], ud[2]
        (s0, l0), (s1, l1) = ko[2 * j], ko[2 * j + 1]
        SA("s_add_u32 s%d, s%d, %d" % (sD0, sW2 + s0, l0 * 64 * 1152), S(sW2 + s0), S(sD0))
        SA("s_add_u32 s%d, s%d, %d" % (sD1, sW2 + s1, l1 * 64 * 1152), S(sW2 + s1), S(sD1))
        def sel(G):
            S_(G.e, "s_cmp_ge_u32 s%d, 2" % sTG, S(sTG), ["scc"])
            S_(G.e, "s_cselect_b32 s%d, s%d, s%d" % (sD0, sD1, sD0), S(sD0) + S(sD1), S(sD0))
        pre.append(sel)
        SA("s_add_u32 s%d, s%d, s%d" % (sD0, sD0, sCOL + role), S(sD0) + S(sCOL + role), S(sD0))
    return (0, f, pre)

def run_dma_item(G, it):
    for p in it[2]: p(G)
    it[1](G)

def try_alloc(G, typ, stages, seq, limit_stage):
    items = []
    while G.next_alloc < len(seq):
        uid = seq[G.next_alloc]
        if isinstance(uid[0], int) and uid[0] > limit_stage: break
        if isinstance(uid[0], int) and stages[uid[0]]["kind"] == "X":
            want = (uid[0] % 6) * 3 + uid[1] + 1
            if want not in G.free: break
            G.free.remove(want); pos = want
        else:
            if not G.free: break
            pos = G.free.pop(0)
        G.unit_pos[uid] = pos
        G.next_alloc += 1
        if isinstance(uid[0], int):
            items.append(unit_dma_item(typ, stages, uid))
    return items

def issue_hg_reads(G, hgs, upto):
    while G.hg_issued < min(upto, len(hgs)):
        h = hgs[G.hg_issued]
        if h["stage"] > G.certified: break
        buf = AFR + 8 * G.nbuf
        assert buf not in G.hgbuf.values()
        G.nbuf = (G.nbuf + 1) % NHG
        pend = []
        for (dst, reg, uid, o) in h.get("xreads", []):
            pend.append(("x", dst, reg, uid, o))
        for (d, reg, uid, o) in h["reads"]:
            pend.append(("t", buf + d, reg, uid, o))
        G.hgbuf[G.hg_issued] = buf
        G.hg_issued += 1
        G.misc.setdefault("rdq", [])
        G.misc["rdq"] = G.misc["rdq"] + pend

def emit_reads(G, n):
    q = G.misc.get("rdq", [])
    while n > 0 and q:
        k, dst, reg, uid, o = q.pop(0)
        const = G.unit_pos[uid] * UNIT + o
        if k == "x":
            off = G.off(reg, const)
            G.e.ins("ds_read_b128 %s, v%d offset:%d" % (vr(dst, 4), reg, off), "dsread", V(reg), V(dst, 4))
        else:
            if not (OPT["nord"] and G.misc.get("cur_stage", 0) > 9): G.trread(dst, reg, const)
        n -= 1
    G.misc["rdq"] = q

def set_mask(e, pair, lo, hi):
    S_(e, "s_mov_b32 s%d, 0x%x" % (pair, lo), [], S(pair))
    S_(e, "s_mov_b32 s%d, 0x%x" % (pair + 1, hi), [], S(pair + 1))

def stats_pre(G):
    e = G.e
    m1, m2, md = sMK, sMK + 2, sMK + 4
    set_mask(e, m1, 0xAAAAAAAA, 0xAAAAAAAA); set_mask(e, m2, 0xCCCCCCCC, 0xCCCCCCCC); set_mask(e, md, 0x00F0000F, 0xF0000F00)
    e.valu("v_and_b32 v%d, 15, v0" % vX0, V(0), V(vX0))
    S_(e, "s_lshl_b32 s%d, s%d, 8" % (sT0, sW), S(sW), S(sT0))
    S_(e, "s_add_u32 s%d, s%d, %d" % (sT0, sT0, L_ST), S(sT0), S(sT0))
    e.valu("v_lshl_add_u32 v%d, v%d, 3, s%d" % (vX0, vX0, sT0), V(vX0) + S(sT0), V(vX0))
    for b in range(2):
        g0 = STG[b]
        e.valu("v_cndmask_b32 v%d, v%d, v%d, %s" % (g0, g0, g0 + 1, sr(m1, 2)), V(g0, 2) + S(m1, 2), V(g0))
        e.valu("v_cndmask_b32 v%d, v%d, v%d, %s" % (g0 + 2, g0 + 2, g0 + 3, sr(m1, 2)), V(g0 + 2, 2) + S(m1, 2), V(g0 + 2))
        e.valu("v_cndmask_b32 v%d, v%d, v%d, %s" % (STS[b] + 1, g0, g0 + 2, sr(m2, 2)), V(g0) + V(g0 + 2) + S(m2, 2), V(STS[b] + 1))
    S_(e, "s_mov_b64 exec, %s" % sr(md, 2), S(md, 2), ["exec"])
    for b in range(2):
        G.misc["cs_tok"] = e.ins("ds_write_b64 v%d, %s offset:%d" % (vX0, vr(STS[b], 2), b * 128), "dswrite", V(vX0) + V(STS[b], 2), [])
    S_(e, "s_mov_b64 exec, -1", [], ["exec"])

def stats_items():
    L = []
    g0m, g1m = sMK, sMK + 2
    L.append(VA("v_and_b32 v%d, 15, v0" % vX0, V(0), V(vX0)))
    def f(G):
        S_(G.e, "s_lshl_b32 s%d, s%d, 8" % (sT1, sTG), S(sTG), S(sT1))
        S_(G.e, "s_add_u32 s%d, s%d, %d" % (sT1, sT1, L_ST), S(sT1), S(sT1))
        G.e.valu("v_lshl_add_u32 v%d, v%d, 3, s%d" % (vX0, vX0, sT1), V(vX0) + S(sT1), V(vX0))
    L.append((4, f))
    for b in range(2):
        L.append(OT(lambda G, b=b: G.e.ins("ds_read2_b64 %s, v%d offset0:%d offset1:%d" % (vr(STG[b], 4), vX0, b * 16, 128 + b * 16), "dsread", V(vX0), V(STG[b], 4))))
    L.append(OT(lambda G: (set_mask(G.e, g0m, 0x0000FFFF, 0), set_mask(G.e, g1m, 0xFFFF0000, 0))))
    L.append(("delay", 3))
    for b in range(2):
        t = STG[b]; u = STS[b]
        k0, k1, s = vK + 3 * b, vK + 3 * b + 1, vK + 3 * b + 2
        bc = vBC + 2 * b
        L.append(VA("v_add_f32 v%d, v%d, v%d" % (t, t, t + 2), V(t) + V(t + 2), V(t)))
        L.append(VA("v_add_f32 v%d, v%d, v%d" % (t + 1, t + 1, t + 3), V(t + 1) + V(t + 3), V(t + 1)))
        L.append(VA("v_mul_f32 v%d, 0x%x, v%d" % (t, f2u(-1.0 / 576), t), V(t), V(t)))
        L.append(VA("v_mul_f32 v%d, 0x%x, v%d" % (t + 1, f2u(1.0 / 576), t + 1), V(t + 1), V(t + 1)))
        L.append(VA("v_fma_f32 v%d, -v%d, v%d, v%d" % (t + 1, t, t, t + 1), V(t, 2), V(t + 1)))
        L.append(VA("v_max_f32 v%d, 0, v%d" % (t + 1, t + 1), V(t + 1), V(t + 1)))
        L.append(VA("v_add_f32 v%d, 0x%x, v%d" % (t + 1, f2u(1e-5), t + 1), V(t + 1), V(t + 1)))
        L.append(TR("v_sqrt_f32 v%d, v%d" % (s, t + 1), V(t + 1), V(s)))
        L.append(TR("v_rsq_f32 v%d, v%d" % (t + 2, t + 1), V(t + 1), V(t + 2)))
        L.append(VA("v_cvt_pk_bf16_f32 v%d, v%d, v%d" % (u, t, t), V(t), V(u)))
        L.append(VA("v_mul_f32 v%d, 0x%x, v%d" % (k0, f2u(C0), t + 2), V(t + 2), V(k0)))
        L.append(VA("v_mul_f32 v%d, v%d, v%d" % (t + 3, t + 2, t + 2), V(t + 2), V(t + 3)))
        L.append(VA("v_lshlrev_b32 v%d, 16, v%d" % (u + 1, u), V(u), V(u + 1)))
        L.append(VA("v_mul_f32 v%d, v%d, v%d" % (t + 3, t + 3, t + 2), V(t + 3) + V(t + 2), V(t + 3)))
        L.append(VA("v_sub_f32 v%d, v%d, v%d" % (u + 1, t, u + 1), V(t) + V(u + 1), V(u + 1)))
        L.append(VA("v_mul_f32 v%d, 0x%x, v%d" % (k1, f2u(C1), t + 3), V(t + 3), V(k1)))
        L.append(VA("v_cvt_pk_bf16_f32 v%d, v%d, v%d" % (u + 2, u + 1, s), V(u + 1) + V(s), V(u + 2)))
        L.append(VA("v_and_b32 v%d, 0xffff0000, v%d" % (u + 3, u + 2), V(u + 2), V(u + 3)))
        L.append(VA("v_sub_f32 v%d, v%d, v%d" % (u + 3, s, u + 3), V(s) + V(u + 3), V(u + 3)))
        L.append(VA("v_cvt_pk_bf16_f32 v%d, 0, v%d" % (u + 3, u + 3), V(u + 3), V(u + 3)))
        L.append(VA("v_cndmask_b32 v%d, 0, v%d, %s" % (bc, u, sr(g0m, 2)), V(u) + S(g0m, 2), V(bc)))
        L.append(VA("v_cndmask_b32 v%d, 0, v%d, %s" % (bc + 1, u + 3, sr(g1m, 2)), V(u + 3) + S(g1m, 2), V(bc + 1)))
        L.append(VA("v_cndmask_b32 v%d, v%d, v%d, %s" % (bc + 1, bc + 1, u + 2, sr(g0m, 2)), V(bc + 1) + V(u + 2) + S(g0m, 2), V(bc + 1)))
    return L

def cs_write(G, tile):
    e = G.e
    e.valu("v_and_b32 v%d, 15, v0" % vX1, V(0), V(vX1))
    e.valu("v_lshl_add_u32 v%d, v%d, 4, s%d" % (vX1, vX1, sCSW), V(vX1) + S(sCSW), V(vX1))
    G.misc["cs_tok"] = e.ins("ds_write_b32 v%d, v%d offset:%d" % (vX1, vCS, (tile & 1) * 512), "dswrite", V(vX1) + V(vCS), [])

def epilogue_items(tile, hdst, dacc=None):
    acc = ACC[tile % 2]
    if dacc is None: dacc = acc
    T = vT
    A0, A2 = vAC
    L = []
    L.append(VA("v_and_b32 v%d, 15, v0" % A2, V(0), V(A2)))
    L.append(VA("v_lshl_add_u32 v%d, v%d, 4, s%d" % (A0, A2, sCSR), V(A2) + S(sCSR), V(A0)))
    L.append(OT(lambda G: G.e.ins("ds_read_b64 %s, v%d offset:%d" % (vr(T, 2), A0, (tile & 1) * 512), "dsread", V(A0), V(T, 2))))
    L.append(VA("v_xor_b32 v%d, 8, v%d" % (A0, A0), V(A0), V(A0)))
    L.append(OT(lambda G: G.e.ins("ds_read_b64 %s, v%d offset:%d" % (vr(T + 2, 2), A0, (tile & 1) * 512), "dsread", V(A0), V(T + 2, 2))))
    L.append(VA("v_lshl_add_u32 v%d, v%d, 1, s%d" % (A2, A2, sB1A), V(A2) + S(sB1A), V(A2)))
    L.append(OT(lambda G: G.e.ins("ds_read_u16 v%d, v%d offset:%d" % (A0, A2, tile * 128), "dsread", V(A2), V(A0))))
    L.append(VA("v_xor_b32 v%d, 32, v%d" % (A2, A2), V(A2), V(A2)))
    L.append(OT(lambda G: G.e.ins("ds_read_u16 v%d, v%d offset:%d" % (A2, A2, tile * 128), "dsread", V(A2), V(A2))))
    L.append(("delay", 4))
    L.append(VA("v_add_f32 v%d, v%d, v%d" % (T, T, T + 1), V(T, 2), V(T)))
    L.append(VA("v_add_f32 v%d, v%d, v%d" % (T + 2, T + 2, T + 3), V(T + 2, 2), V(T + 2)))
    for a in range(2):
        L.append(VA("v_lshlrev_b32 v%d, 16, v%d" % (vAC[a], vAC[a]), V(vAC[a]), V(vAC[a])))
    for a in range(2):
        L.append(VA("v_cvt_pk_bf16_f32 v%d, v%d, v%d" % (vAC[a] + 1, T + 2 * a, vAC[a]), V(T + 2 * a) + V(vAC[a]), V(vAC[a] + 1)))
    for a in range(2):
        L.append(VA("v_lshlrev_b32 v%d, 16, v%d" % (T + 2 * a + 1, vAC[a] + 1), V(vAC[a] + 1), V(T + 2 * a + 1)))
    for a in range(2):
        L.append(VA("v_sub_f32 v%d, v%d, v%d" % (T + 2 * a, T + 2 * a, T + 2 * a + 1), V(T + 2 * a, 2), V(T + 2 * a)))
    for a in range(2):
        L.append(VA("v_cvt_pk_bf16_f32 v%d, v%d, v%d" % (vAC[a], T + 2 * a + 1, T + 2 * a), V(T + 2 * a, 2), V(vAC[a])))
    L.append(("delay", 1))
    for a in range(2):
        for b in range(2):
            L.append((4, lambda G, a=a, b=b: G.e.mfma(dacc + 8 * a + 4 * b, vAC[a], vBC + 2 * b, acc + 8 * a + 4 * b, k=16)))
    L.append(OT(lambda G: G.misc.__setitem__("corr_done", tile)))
    L.append(("delay", 2))
    for b in range(2):
        k0, k1, s = vK + 3 * b, vK + 3 * b + 1, vK + 3 * b + 2
        for a in range(2):
            q = [dacc + 8 * a + 4 * b + i for i in range(4)]
            if not OPT["nogelu"]:
                for i in range(4): L.append(VA("v_mul_f32 v%d, v%d, v%d" % (T + i, q[i], q[i]), V(q[i]), V(T + i)))
                for i in range(4): L.append(VA("v_fma_f32 v%d, v%d, v%d, v%d" % (T + i, T + i, k1, k0), V(T + i) + V(k1) + V(k0), V(T + i)))
                for i in range(4): L.append(VA("v_mul_f32 v%d, v%d, v%d" % (T + i, q[i], T + i), V(q[i]) + V(T + i), V(T + i)))
                for i in range(4): L.append(TR("v_exp_f32 v%d, v%d" % (T + i, T + i), V(T + i), V(T + i)))
                for i in range(4): L.append(VA("v_fma_f32 v%d, v%d, v%d, v%d" % (T + i, T + i, s, s), V(T + i) + V(s), V(T + i)))
                for i in range(4): L.append(TR("v_rcp_f32 v%d, v%d" % (T + i, T + i), V(T + i), V(T + i)))
                for i in range(4): L.append(VA("v_mul_f32 v%d, v%d, v%d" % (q[i], q[i], T + i), V(q[i]) + V(T + i), V(q[i])))
            for i in range(2):
                d = hdst + 4 * b + 2 * a + i
                L.append(VA("v_cvt_pk_bf16_f32 v%d, v%d, v%d" % (d, q[2 * i], q[2 * i + 1]), V(q[2 * i]) + V(q[2 * i + 1]), V(d)))
        def sw(G, b=b):
            e = G.e
            lab = G.newlabel("sw")
            e.raw("s_cbranch_vccz %s" % lab); e.pos += 1
            p0 = e.pos
            for i in range(2):
                r0, r1 = hdst + 4 * b + i, hdst + 4 * b + 2 + i
                e.valu("v_swap_b32 v%d, v%d" % (r0, r1), V(r0) + V(r1), V(r0) + V(r1))
            e.pos = p0
            for r in V(hdst + 4 * b, 4): e.lastw[r] = ("valu", p0 - 1, None)
            e.label(lab)
        L.append((4, sw))
        def st(G, b=b):
            e = G.e
            S_(e, "s_add_u32 s%d, s%d, %d" % (sT1, sHB, tile * 16384 + b * 1024), S(sHB), S(sT1))
            if OPT["nost"] == 1: tok = 0
            else:
              tok = e.ins("buffer_store_dwordx4 %s, v%d, %s, s%d offen%s" % (vr(hdst + 4 * b, 4), vL16, sr(SWS, 4), sT1, "" if OPT["nost"] == 2 else " sc1"), "vstore",
                        V(hdst + 4 * b, 4) + V(vL16) + S(SWS, 4) + S(sT1), [], widestore=V(hdst + 4 * b, 4))
            if OPT["nost"] == 3: tok = 0
            if b == 1:
                G.pub_pending.append([tile, tok, G.misc["cur_stage"]])
                G.misc["h_done"] = tile
        L.append(OT(st))
    return L

def poll(G, srdreg, saddr, tmp, need, kind):
    pr = sMK + 6; pr2 = sMK + 4
    def load_txt():
        if kind == "flag":
            return ["v_and_b32 v%d, 3, v0" % tmp, "v_lshlrev_b32 v%d, 3, v%d" % (tmp, tmp),
                    "buffer_load_dwordx2 %s, v%d, %s, s%d offen sc1" % (vr(tmp, 2), tmp, sr(srdreg, 4), saddr)]
        return ["buffer_load_dwordx2 %s, off, %s, 0 sc1" % (vr(tmp, 2), sr(srdreg, 4))]
    def cond_txt():
        if kind == "flag":
            return ["s_add_u32 s%d, s%d, %d" % (sT0, sE, need),
                    "v_subrev_u32 v%d, s%d, v%d" % (tmp, sT0, tmp),
                    "v_cmp_ne_u32 %s, s%d, v%d" % (sr(pr2, 2), sE + 1, tmp + 1),
                    "v_cmp_lt_u32 %s, %d, v%d" % (sr(pr, 2), 15 - need, tmp),
                    "s_lshl_b32 s%d, 1, s%d" % (sT0, sNQ if saddr == sF1R else sKQ),
                    "s_andn2_b32 s%d, 15, s%d" % (sT0, sT0),
                    "s_nop 0",
                    "s_or_b32 s%d, s%d, s%d" % (pr, pr, pr2),
                    "s_and_b32 s%d, s%d, s%d" % (pr, pr, sT0)]
        return ["v_readfirstlane_b32 s%d, v%d" % (sE, tmp), "v_readfirstlane_b32 s%d, v%d" % (sE + 1, tmp + 1),
                "s_nop 2", "s_cmp_eq_u32 s%d, 0" % (sE + 1)]
    st = {}
    def issue(G):
        if kind == "dbg":
            for l in load_txt(): G.e.raw(l); G.e.pos += 1
        else: dw_block(G, load_txt(), V(tmp, 2))
        G.misc["pt%d" % tmp] = G.e.vmseq
    def check(G):
        e = G.e
        if OPT["nopoll"] and kind == "flag": return
        lok = G.newlabel("ok"); lsp = G.newlabel("sp")
        vt = G.misc["pt%d" % tmp]
        n = sum(1 for (q, r) in e.vm if q > vt)
        L = ["s_waitcnt vmcnt(%d)" % n] + cond_txt() + ["s_cbranch_scc0 %s" % lok, "s_mov_b32 s%d, %d" % (sSPIN, OPT["spin"]), lsp + ":", "s_sleep 1"]
        L += load_txt() + ["s_waitcnt vmcnt(0)"] + cond_txt() + ["s_cbranch_scc0 %s" % lok,
              "s_sub_u32 s%d, s%d, 1" % (sSPIN, sSPIN), "s_cmp_lg_u32 s%d, 0" % sSPIN, "s_cbranch_scc1 %s" % lsp, lok + ":", "s_nop 1"]
        if kind == "dbg":
            for l in L:
                if l.endswith(":"): e.label(l[:-1])
                else: e.raw(l)
        else: dw_block(G, L, V(tmp, 2))
    return issue, check

def hload_items(typ, level):
    ko, hreg = korder(typ)
    keep = [(0, 2), (0, 3)] if typ == "A" else [(0, 3), (0, 4)]
    L = []
    for k in ko:
        if k[1] == level and k not in keep:
            for b in range(2):
              def f(G, k=k, b=b):
                e = G.e
                r = hreg[k]
                assert G.misc.get("xdead", -1) >= (r + 7 - XF) // 16, ("x regs still live", k, r, G.misc.get("xdead"))
                if k in (ko[16], ko[17]):
                    assert G.misc.get("h_done", -1) == (3 if typ == "A" else 4), "last epilogue not finished"
                if OPT["hdbg"] == 1: S_(e, "s_add_u32 s%d, s%d, %d" % (sT1, sHL, 0), S(sHL + k[0]), S(sT1))
                else: S_(e, "s_add_u32 s%d, s%d, %d" % (sT1, sHL + k[0], k[1] * 16384), S(sHL + k[0]), S(sT1))
                if OPT["hdbg"] != 2:
                  e.ins("buffer_load_dwordx4 %s, v%d, %s, s%d offen offset:%d%s" % (vr(r + 4 * b, 4), vL16, sr(SWS, 4), sT1, b * 1024, "" if OPT["hdbg"] == 3 else " sc1"), "vload",
                      V(vL16) + S(SWS, 4) + S(sT1), V(r + 4 * b, 4))
                G.misc["hl"] = G.misc.get("hl", frozenset()) | {r + 4 * b}
              L.append(OT(f))
    return L

def publish_pre(G, typ, s):
    npair = 4 if typ == "A" else 5
    while G.pub_pending and (s - G.pub_pending[0][2] >= OPT["pubd"] or (G.pub_pending[0][0] == npair - 1 and s - G.pub_pending[0][2] >= 1)):
        tile, tok, _ = G.pub_pending.pop(0)
        G.e.wait_vm_token(tok)
        G.misc["pub_ready"] = tile

def publish(G, typ, s, tmp):
    npair = 4 if typ == "A" else 5
    tile = G.misc.get("pub_ready", -1)
    if tile > G.published:
        flag_store(G, SWS, sF1R, sNQ, 15 if tile == npair - 1 else tile + 1, tmp)
        if OPT["th"]:
            G.e.valu("v_lshlrev_b32 v%d, 7, v0" % tmp, V(0), V(tmp))
            S_(G.e, "s_add_u32 s%d, s%d, %d" % (sT0, sHB, tile * 16384), S(sHB), S(sT0))
            touch(G, tmp, SWS, sT0, 0xffff, 0)
        G.published = tile

def vrun(G, budget):
    while G.q and budget > 0:
        it = G.q.pop(0)
        if it[0] == "delay": continue
        it[1](G)
        budget -= max(it[0], 1)

def qcost(G):
    return sum(it[0] for it in G.q if it[0] != "delay")

def run_stages(G, typ, stages, seq, hgs, s_from, s_to):
    e = G.e
    npair = 4 if typ == "A" else 5
    nP1 = 9 + 3 * (npair - 1)
    ko, hreg = korder(typ)
    late = [ACC[(npair - 1) % 2] + 4 * i for i in range(4)] + [vBC, 96]
    keepregs = [hreg[(0, l)] + 4 * b for l in (npair - 2, npair - 1) for b in range(2)]
    for s in range(s_from, s_to):
        st = stages[s]
        G.misc["cur_stage"] = s
        e.comment("==== stage %d %s" % (s, {k: v for k, v in st.items() if k != "units"}))
        if OPT["ststamp"] and s >= OPT["ststamp"]: G.stamp(True)
        isx = st["kind"] == "X"
        hard = isx or s in (9, nP1, nP1 + 9) or not OPT["split"]
        p1 = st["kind"] in ("X", "W")
        stmp = vSY1 if p1 else vA + 2
        ahead = 1 if (isx or not OPT["split"]) else 2
        if OPT["tr0"] <= s < OPT["tr1"]: G.trace(stmp)
        for h in G.top_hooks.pop(s, []): h(G)
        for sa in range(s + 1, min(s + ahead, len(stages) - 1) + 1):
            for ui in range(len(stages[sa]["units"])):
                while (sa, ui) not in G.unit_tok:
                    assert G.misc["dmaq"], ("dma not allocated in time", s, sa, ui)
                    run_dma_item(G, G.misc["dmaq"].pop(0))
            e.wait_vm_token(max(G.unit_tok[(sa, ui)] for ui in range(len(stages[sa]["units"]))))
        G.misc["cert_at"] = dict(G.misc.get("cert_at", {})); G.misc["cert_at"][s] = s + ahead
        def after_sync(G, k):
            while G.misc.get("synced", -1) < k:
                kk = G.misc.get("synced", -1) + 1
                G.misc["synced"] = kk
                G.certified = G.misc["cert_at"][kk]
                if kk > 0:
                    for ui in range(len(stages[kk - 1]["units"])): G.free.append(G.unit_pos[(kk - 1, ui)])
                G.q = G.post_items.pop(("pre", kk), []) + G.q + G.post_items.pop(kk, [])
            if not OPT["phase1_only"]:
                publish(G, typ, s, stmp - 1)
            lim = s + (OPT["xla"] if isx else OPT["wla"])
            if lim >= nP1: lim = max(min(lim, s + OPT["pla"]), nP1 - 1)
            dm = try_alloc(G, typ, stages, seq, lim)
            if isx: G.q = dm + G.q
            else: G.misc["dmaq"] = G.misc.get("dmaq", []) + dm
        pend_check = False
        if not OPT["phase1_only"]: publish_pre(G, typ, s)
        if hard:
            e.barrier()
            if OPT["tr0"] <= s < OPT["tr1"]: G.trace(stmp)
            after_sync(G, s)
        else:
            arrive(G, s, stmp)
            if G.misc.get("synced", -1) < s - 1:
                if OPT["kchk"] <= 1: sync_issue(G, stmp)
                pend_check = True
            else:
                after_sync(G, s - 1)
        idx = [i for i, h in enumerate(hgs) if h["stage"] == s]
        def gap():
            G.misc["mcount"] = G.misc.get("mcount", 0) + 1
            G.fill()
            dq = G.misc.get("dmaq")
            if dq and not isx:
                it = dq[0]
                if it[2] and OPT["micro"]:
                    it[2][0](G)
                    G.misc["dmaq"] = [(it[0], it[1], it[2][1:])] + list(dq[1:])
                elif G.misc.get("gapn", 0) + 1 >= OPT["dmagap"] and G.misc.get("rdq"):
                    G.misc["dma_filler"] = lambda: emit_reads(G, 1)
                    G.misc["dmaq"] = list(dq[1:])
                    run_dma_item(G, it)
                    G.misc["gapn"] = 0
                    G.misc["hgapn"] = G.misc.get("hgapn", 0) + 1
                    return
            emit_reads(G, OPT["rdfast"] if not isx else 2)
            G.misc["hgapn"] = G.misc.get("hgapn", 0) + 1
            if G.misc.get("hq") and G.misc["hgapn"] >= OPT["hgap"]:
                G.misc["hq"] = list(G.misc["hq"])
                G.misc["hq"].pop(0)[1](G)
                G.misc["hgapn"] = 0
                return
            G.misc["gapn"] = G.misc.get("gapn", 0) + 1

        for hn, hi in enumerate(idx):
            h = hgs[hi]
            if OPT["ladder"] and not isx:
                pr = 3 - (hn * 4) // len(idx)
                if pr != G.misc.get("prio"):
                    e.raw("s_setprio %d" % pr); e.pos += 1
                    G.misc["prio"] = pr
            if pend_check and hn == OPT["kchk"] - 1 and hn > 0: sync_issue(G, stmp)
            if pend_check and hn == OPT["kchk"]:
                sg = ("sg", s) in G.post_items
                sync_check(G, s - 1, stmp, sg)
                after_sync(G, s - 1)
                if sg: G.q = G.q + G.post_items.pop(("sg", s))
                for hk in G.top_hooks.pop(("v", s), []): hk(G)
            issue_hg_reads(G, hgs, hi + 1)
            buf = G.hgbuf[hi]
            while any((k == "t" and buf <= d < buf + 8) or (k == "x" and any(d == m[2] for m in h["mf"])) for (k, d, r, u, o) in G.misc.get("rdq", [])):
                emit_reads(G, 1)
            for n, (acc, ao, breg, first) in enumerate(h["mf"]):
                if first and st["kind"] == "W":
                    while st["p"] >= 2 and G.misc.get("h_done", -1) < st["p"] - 2:
                        G.credit = 100; G.fill()
                if st["kind"] == "PA" and st["j"] == 0 and first:
                    while G.misc.get("h_done", -1) < npair - 2:
                        G.credit = 100; G.fill()
                    if acc in late:
                        while G.misc.get("corr_done", -1) < npair - 1:
                            G.credit = 100; G.fill()
                if st["kind"] == "PA" and breg in (hreg[(0, npair - 1)], hreg[(0, npair - 1)] + 4):
                    while G.misc.get("h_done", -1) < npair - 1:
                        G.credit = 100; G.fill()
                if st["kind"] == "PA" and breg not in keepregs:
                    while breg not in G.misc.get("hl", ()):
                        assert G.misc.get("hq"), ("h load not scheduled before use", s, breg)
                        G.misc["hq"] = list(G.misc["hq"]); G.misc["hq"].pop(0)[1](G)
                if n == 0: e._autowait(V(buf, 8))
                e.mfma(acc, buf + ao, breg, None if first else acc)
                if n == 0:
                    G.hgbuf.pop(hi - 1, None)
                    issue_hg_reads(G, hgs, hi + 3)
                gap()
            if "p1" in h:
                p, c, a = h["p1"]
                if not OPT["nocs"] and a == 0:
                    e.mfma(vCS, vONES, buf, None if c == 0 else vCS)
                    gap()
                if isx:
                    for b in range(2):
                        if a == 0: e.mfma(STG[b], X(c, 0, b), X(c, 0, b), None if c == 0 else STG[b])
                        else: e.mfma(STS[b], vONES, X(c, 1, b), None if c == 0 else STS[b])
                        gap()
                if p == npair - 1 and a == 1: G.misc["xdead"] = c
                if h["last"]:
                    if p == 0:
                        G.drain()
                        stats_pre(G)
                    cs_write(G, p)
                    G.misc["deadline"] = (G.misc["mcount"] + (81 if not OPT["nocs"] else 72)) if p < npair - 1 else None
                    def th(G): G.e.wait_ds_token(G.misc["cs_tok"])
                    if s + 1 in (9, nP1) or not OPT["split"]:
                        G.top_hooks.setdefault(s + 1, []).append(th)
                    items = []
                    if p == 0: items += stats_items()
                    if p == npair - 1 and not OPT["phase1_only"]:
                        items += epilogue_items(p, hreg[(0, p)], dacc=hreg[ko[16]])
                        assert hreg[ko[17]] == hreg[ko[16]] + 8
                    else:
                        items += epilogue_items(p, HOWN)
                    if s + 1 in (9, nP1) or not OPT["split"]: G.post_items.setdefault(s + 1, []).extend(items)
                    else: G.post_items.setdefault(("sg", s + 1), []).extend(items)
            if h.get("hand") is not None:
                if h["hand"] == 0: hand_setup(G)
                G.q = G.q + [("delay", 3)] + hand_write_items(typ, h["hand"])
            if h.get("lastA"): end_passA(G, typ, stages, s)

vL4 = 23

def hand_setup(G):
    e = G.e
    aw, ar = vA, vA + 3
    e.valu("v_add_u32 v%d, s%d, v%d" % (aw, sWB, vL16), S(sWB) + V(vL16), V(aw))
    e.valu("v_xor_b32 v%d, 0x1000, v%d" % (ar, aw), V(aw), V(ar))
    G.base[aw] = 0; G.base[ar] = 0

def hand_write_items(typ, ts):
    quads = p2_quads(typ)
    aw = vA
    L = []
    for b in range(2):
        def f(G, b=b):
            q = quads[(ts, 1, b)]
            o = G.off(aw, G.unit_pos[("HAND", 2 * ts + b)] * UNIT)
            G.misc["cs_tok"] = G.e.ins("ds_write_b128 v%d, %s offset:%d" % (aw, vr(q, 4), o), "dswrite", V(aw) + V(q, 4), [])
        L.append(OT(f))
    return L

def end_passA(G, typ, stages, s):
    e = G.e
    G.drain()
    quads = p2_quads(typ)
    nts = 4 if typ == "A" else 3
    ar = vA + 3
    def th(G): G.e.wait_ds_token(G.misc["cs_tok"])
    G.top_hooks.setdefault(s + 1, []).append(th)
    L = []
    rbuf = [vT, vK, quads[(2, 1, 0)], quads[(2, 1, 1)]]
    seq = [(ts, b) for ts in range(nts) for b in range(2)]
    def rd(ts, b, r):
        def f(G):
            o = G.off(ar, G.unit_pos[("HAND", 2 * ts + b)] * UNIT)
            G.e.ins("ds_read_b128 %s, v%d offset:%d" % (vr(r, 4), ar, o), "dsread", V(ar), V(r, 4))
        return OT(f)
    for i in range(4): L.append(rd(seq[i][0], seq[i][1], rbuf[i % 4]))
    L.append(VA("v_lshlrev_b32 v%d, 2, v0" % vL4, V(0), V(vL4)))
    L.append(("delay", 2))
    for i, (ts, b) in enumerate(seq):
        q = quads[(ts, 0, b)]; r = rbuf[i % 4]
        q0 = quads[(ts, 0, 0)]; q1 = quads[(ts, 0, 1)]
        for k in range(4):
            L.append(VA("v_add_f32 v%d, v%d, v%d" % (q + k, q + k, r + k), V(q + k) + V(r + k), V(q + k)))
        if i + 4 < len(seq): L.append(rd(seq[i + 4][0], seq[i + 4][1], r))
        for k in range(2):
            d = q0 + 2 * b + k
            L.append(VA("v_cvt_pk_bf16_f32 v%d, v%d, v%d" % (d, q + 2 * k, q + 2 * k + 1), V(q + 2 * k, 2), V(d)))
        if b == 1:
            L.append(VA("v_bitop3_b32 v%d, v%d, v%d, v%d bitop3:0x96" % (q1, q0, q0 + 1, q0 + 2), V(q0, 3), V(q1)))
            L.append(VA("v_bitop3_b32 v%d, v%d, v%d, s%d bitop3:0x96" % (q1, q1, q0 + 3, sE), V(q1) + V(q0 + 3) + S(sE), V(q1)))
            def st(G, ts=ts, q0=q0, q1=q1):
                e = G.e
                if ts < 2:
                    S_(e, "s_and_b32 s%d, s%d, 2" % (sT0, sKQ), S(sKQ), S(sT0))
                    S_(e, "s_xor_b32 s%d, s%d, %d" % (sT0, sT0, 2 + ts), S(sT0), S(sT0))
                elif ts == 2: S_(e, "s_xor_b32 s%d, s%d, 1" % (sT0, sKQ), S(sKQ), S(sT0))
                else: S_(e, "s_mov_b32 s%d, 4" % sT0, [], S(sT0))
                S_(e, "s_lshl4_add_u32 s%d, s%d, s%d" % (sT0, sT0, sKQ), S(sT0) + S(sKQ), S(sT0))
                S_(e, "s_lshl_b32 s%d, s%d, 12" % (sT0, sT0), S(sT0), S(sT0))
                S_(e, "s_add_u32 s%d, s%d, s%d" % (sT0, sT0, sPS), S(sT0) + S(sPS), S(sT0))
                e.ins("buffer_store_dwordx4 %s, v%d, %s, s%d offen sc1" % (vr(q0, 4), vL16, sr(SWS, 4), sT0), "vstore",
                      V(q0, 4) + V(vL16) + S(SWS, 4) + S(sT0), [], widestore=V(q0, 4))
                e.ins("buffer_store_dword v%d, v%d, %s, s%d offen offset:1024 sc1" % (q1, vL4, sr(SWS, 4), sT0), "vstore",
                      V(q1) + V(vL4) + S(SWS, 4) + S(sT0), [])
            L.append(OT(st))
    G.post_items.setdefault(("pre", s + 1), []).extend(L)

def final(G, typ, stages):
    e = G.e
    quads = p2_quads(typ)
    G.drain()
    aw, ar = vA, vA + 3
    own = [quads[(0, 1, b)] for b in range(2)]
    give = [quads[(1, 1, b)] for b in range(2)]
    G.trace(22)
    RB = XF
    def loads(n0, cnt, sbase):
        L = []
        for n in range(cnt):
            r = RB + 8 * (n0 + n)
            L.append("buffer_load_dwordx4 %s, v%d, %s, s%d offen sc1" % (vr(r, 4), vL16, sr(SWS, 4), sbase + n))
            L.append("buffer_load_dword v%d, v%d, %s, s%d offen offset:1024 sc1" % (r + 4, vL4, sr(SWS, 4), sbase + n))
        return L
    def verify(n0, cnt):
        L = []
        for n in range(cnt):
            r = RB + 8 * (n0 + n)
            L.append("v_bitop3_b32 v%d, v%d, v%d, v%d bitop3:0x96" % (r + 5, r, r + 1, r + 2))
            L.append("v_bitop3_b32 v%d, v%d, v%d, v%d bitop3:0x96" % (r + 5, r + 5, r + 3, r + 4))
            L.append("v_xor_b32 v%d, s%d, v%d" % (r + 5, sE, r + 5))
            if n > 0: L.append("v_or_b32 v%d, v%d, v%d" % (RB + 8 * n0 + 5, RB + 8 * n0 + 5, r + 5))
        L.append("v_cmp_ne_u32 vcc, 0, v%d" % (RB + 8 * n0 + 5))
        L.append("s_nop 3")
        L.append("s_cmp_lg_u64 vcc, 0")
        return L
    so, sl = sKW, sKW + 4
    S_(e, "s_lshl_b32 s%d, s%d, 16" % (sMK, sKQ), S(sKQ), S(sMK))
    S_(e, "s_add_u32 s%d, s%d, s%d" % (sMK, sMK, sPS), S(sMK) + S(sPS), S(sMK))
    for n in range(3):
        S_(e, "s_add_u32 s%d, s%d, %d" % (sT0, sKQ, n + 1), S(sKQ), S(sT0))
        S_(e, "s_and_b32 s%d, s%d, 3" % (sT0, sT0), S(sT0), S(sT0))
        S_(e, "s_lshl_b32 s%d, s%d, 12" % (sT0, sT0), S(sT0), S(sT0))
        S_(e, "s_add_u32 s%d, s%d, s%d" % (so + n, sT0, sMK), S(sT0) + S(sMK), S(so + n))
    e.nop(max(e._need("vload", [], V(RB, 64), "x"), 0))
    for l in loads(0, 3, so): e.raw(l); e.pos += 1
    if typ == "A":
        for n in range(4):
            S_(e, "s_add_u32 s%d, s%d, %d" % (sl + n, sPS, 4 * 65536 + n * 4096), S(sPS), S(sl + n))
        lab = G.newlabel("nl")
        e.raw("s_cmp_eq_u32 s%d, s%d" % (sTG, sKQ)); e.raw("s_cbranch_scc0 %s" % lab)
        for l in loads(3, 4, sl): e.raw(l)
        e.label(lab)
    for b in range(2):
        o = G.off(aw, G.unit_pos[("HAND2", b)] * UNIT)
        tok = e.ins("ds_write_b128 v%d, %s offset:%d" % (aw, vr(give[b], 4), o), "dswrite", V(aw) + V(give[b], 4), [])
    ba, oa = vT, vT + 1
    e.valu("v_lshrrev_b32 v%d, 4, v0" % (vT + 2), V(0), V(vT + 2))
    S_(e, "s_lshl_b32 s%d, s%d, 5" % (sT0, sG), S(sG), S(sT0))
    S_(e, "s_sub_u32 s%d, s%d, s%d" % (sT1, sT0, sDBB), S(sT0) + S(sDBB), S(sT1))
    S_(e, "s_add_u32 s%d, s%d, %d" % (sT1, sT1, L_B2), S(sT1), S(sT1))
    e.valu("v_lshl_add_u32 v%d, v%d, 3, s%d" % (ba, vT + 2, sT1), V(vT + 2) + S(sT1), V(ba))
    e.valu("v_and_b32 v%d, 15, v0" % oa, V(0), V(oa))
    e.valu("v_mul_u32_u24 v%d, 1152, v%d" % (oa, oa), V(oa), V(oa))
    e.valu("v_lshl_add_u32 v%d, v%d, 3, v%d" % (oa, vT + 2, oa), V(oa) + V(vT + 2), V(oa))
    sOB = sMK + 1
    S_(e, "s_lshl2_add_u32 s%d, s%d, s%d" % (sOB, sM, sTG), S(sM) + S(sTG), S(sOB))
    S_(e, "s_mul_i32 s%d, s%d, %d" % (sOB, sOB, 32 * 1152), S(sOB), S(sOB))
    S_(e, "s_add_u32 s%d, s%d, s%d" % (sOB, sOB, sT0), S(sOB) + S(sT0), S(sOB))
    e.wait_ds_token(tok)
    e.barrier()
    R = AFR
    for b in range(2):
        o = G.off(ar, G.unit_pos[("HAND2", b)] * UNIT)
        e.ins("ds_read_b128 %s, v%d offset:%d" % (vr(R + 4 * b, 4), ar, o), "dsread", V(ar), V(R + 4 * b, 4))
    def finish_tile(acc, col_s, n0, cnt, sbase, init):
        bb = R + 8; f = R + 12
        e.valu("v_add_u32 v%d, s%d, v%d" % (bb, col_s, ba), S(col_s) + V(ba), V(bb))
        e.ins("ds_read_b64 %s, v%d" % (vr(bb, 2), bb), "dsread", V(bb), V(bb, 2))
        e.valu("v_lshlrev_b32 v%d, 16, v%d" % (f, bb), V(bb), V(f))
        e.valu("v_and_b32 v%d, 0xffff0000, v%d" % (f + 1, bb), V(bb), V(f + 1))
        e.valu("v_lshlrev_b32 v%d, 16, v%d" % (f + 2, bb + 1), V(bb + 1), V(f + 2))
        e.valu("v_and_b32 v%d, 0xffff0000, v%d" % (f + 3, bb + 1), V(bb + 1), V(f + 3))
        for b in range(2):
            q = acc[b]
            for k in range(4):
                if init:
                    e.valu("v_mov_b32 v%d, v%d" % (q + k, f + k), V(f + k), V(q + k))
                else:
                    e.valu("v_add_f32 v%d, v%d, v%d" % (q + k, q + k, R + 4 * b + k), V(q + k) + V(R + 4 * b + k), V(q + k))
                    e.valu("v_add_f32 v%d, v%d, v%d" % (q + k, q + k, f + k), V(q + k) + V(f + k), V(q + k))
        lok = G.newlabel("fo"); lsp = G.newlabel("fs")
        e.raw("s_waitcnt vmcnt(0)")
        for l in verify(n0, cnt): e.raw(l)
        e.raw("s_cbranch_scc0 %s" % lok)
        if OPT["nopoll"]: e.raw("s_branch %s" % lok)
        e.raw("s_mov_b32 s%d, %d" % (sSPIN, OPT["spin"]))
        e.label(lsp)
        e.raw("s_sleep %d" % OPT["fsleep"])
        for l in loads(n0, cnt, sbase): e.raw(l)
        e.raw("s_waitcnt vmcnt(0)")
        for l in verify(n0, cnt): e.raw(l)
        e.raw("s_cbranch_scc0 %s" % lok)
        e.raw("s_sub_u32 s%d, s%d, 1" % (sSPIN, sSPIN)); e.raw("s_cmp_lg_u32 s%d, 0" % sSPIN); e.raw("s_cbranch_scc1 %s" % lsp)
        e.label(lok)
        e.vm = []
        if not init:
            G.stamp(); G.trace(22)
        for n in range(cnt):
            r = RB + 8 * (n0 + n)
            for b in range(2):
                q = acc[b]
                for k in range(2):
                    d = r + 2 * b + k
                    e.valu("v_lshlrev_b32 v%d, 16, v%d" % (r + 6, d), V(d), V(r + 6))
                    e.valu("v_and_b32 v%d, 0xffff0000, v%d" % (r + 7, d), V(d), V(r + 7))
                    e.valu("v_add_f32 v%d, v%d, v%d" % (q + 2 * k, q + 2 * k, r + 6), V(q + 2 * k) + V(r + 6), V(q + 2 * k))
                    e.valu("v_add_f32 v%d, v%d, v%d" % (q + 2 * k + 1, q + 2 * k + 1, r + 7), V(q + 2 * k + 1) + V(r + 7), V(q + 2 * k + 1))
        S_(e, "s_add_u32 s%d, s%d, s%d" % (sT1, sOB, col_s), S(sOB) + S(col_s), S(sT1))
        for b in range(2):
            q = acc[b]
            e.valu("v_cvt_pk_bf16_f32 v%d, v%d, v%d" % (q, q, q + 1), V(q, 2), V(q))
            e.valu("v_cvt_pk_bf16_f32 v%d, v%d, v%d" % (q + 1, q + 2, q + 3), V(q + 2, 2), V(q + 1))
            if b == 1: S_(e, "s_add_u32 s%d, s%d, %d" % (sT1, sT1, 16 * 1152), S(sT1), S(sT1))
            e.ins("buffer_store_dwordx2 %s, v%d, %s, s%d offen" % (vr(q, 2), oa, sr(SOUT, 4), sT1), "vstore", V(q, 2) + V(oa) + S(SOUT, 4) + S(sT1), [])
    finish_tile(own, sCOL + 3, 0, 3, so, False)
    if typ == "A":
        lab = G.newlabel("nl")
        S_(e, "s_cmp_eq_u32 s%d, s%d" % (sTG, sKQ), S(sTG) + S(sKQ), ["scc"])
        e.raw("s_cbranch_scc0 %s" % lab); e.pos += 1
        finish_tile(give, sCOL + 2, 3, 4, sl, True)
        e.label(lab)

def finish(G):
    e = G.e
    G.drain()
    G.stamp()
    if OPT["trace"]:
        e.raw("s_waitcnt vmcnt(0) lgkmcnt(0)")
        G.trace(22)
        e.raw("v_mov_b32 v22, s92")
        e.raw("s_mov_b64 exec, %s" % sr(sWM, 2))
        e.raw("ds_write_b32 v%d, v22 offset:%d" % (vL16, 6144 + 15 * 128 + 12))
        e.raw("s_mov_b64 exec, -1")
        e.raw("s_waitcnt lgkmcnt(0)")
        e.raw("s_barrier")
        e.raw("s_lshl2_add_u32 s%d, s%d, s%d" % (sT0, sM, sKQ))
        e.raw("s_lshl2_add_u32 s%d, s%d, s%d" % (sT0, sT0, sNQ))
        e.raw("s_lshl_b32 s%d, s%d, 11" % (sT0, sT0))
        e.raw("s_add_u32 s%d, s%d, 0x%x" % (sT0, sT0, WS_TS))
        e.raw("ds_read_b128 v[24:27], v%d offset:6144" % vL16)
        e.raw("ds_read_b128 v[28:31], v%d offset:7168" % vL16)
        e.raw("s_waitcnt lgkmcnt(0)")
        e.raw("buffer_store_dwordx4 v[24:27], v%d, %s, s%d offen" % (vL16, sr(SWS, 4), sT0))
        e.raw("buffer_store_dwordx4 v[28:31], v%d, %s, s%d offen offset:1024" % (vL16, sr(SWS, 4), sT0))
        print("ntrace", G.tag, G.misc["ntrace"], file=sys.stderr)
    if OPT["stamps"]:
        e.raw("s_waitcnt vmcnt(0) lgkmcnt(0)")
        e.raw("s_memrealtime s[62:63]")
        e.raw("s_waitcnt lgkmcnt(0)")
        e.raw("v_mov_b32 v33, s62"); e.raw("v_mov_b32 v34, s100"); e.raw("v_mov_b32 v35, 0")
        e.raw("s_lshl2_add_u32 s%d, s%d, s%d" % (sT0, sM, sKQ))
        e.raw("s_lshl2_add_u32 s%d, s%d, s%d" % (sT0, sT0, sNQ))
        e.raw("s_lshl3_add_u32 s%d, s%d, s%d" % (sT0, sT0, sW))
        e.raw("s_lshl_b32 s%d, s%d, 6" % (sT0, sT0))
        e.raw("s_add_u32 s%d, s%d, 0x%x" % (sT0, sT0, WS_TS))
        for i in range(NSTAMP):
            e.raw("v_mov_b32 v%d, s%d" % (24 + i, sTS + i))
        e.raw("s_mov_b64 exec, 1")
        for i in range(3):
            e.raw("buffer_store_dwordx4 %s, off, %s, s%d offset:%d" % (vr(24 + 4 * i, 4), sr(SWS, 4), sT0, 16 * i))
    e.raw("s_endpgm")

def schedule_polls(G, typ, stages):
    npair = 4 if typ == "A" else 5
    nP1 = 9 + 3 * (npair - 1)
    ko, hreg = korder(typ)
    if typ == "A": chk_stage = {0: nP1 - 2, 1: nP1, 2: nP1 + 3, 3: nP1 + 5, 4: nP1 + 7}
    else: chk_stage = {0: nP1 - 2, 1: nP1 - 1, 2: nP1 + 1, 3: nP1 + 4, 4: nP1 + 7}
    for k in chk_stage:
        chk_stage[k] += OPT.get("ps%s%d" % (typ, k), 0)
    for lev, cs in chk_stage.items():
        tmp = vQ + 4 * (lev & 1) if cs <= nP1 else (hreg[ko[15]] if lev < 4 else 22)
        iss, chk = poll(G, SWS, sF1R, tmp, lev + 1, "flag")
        G.post_items.setdefault(("pre", cs - 1), []).append((8, iss))
        def hook(G, lev=lev, chk=chk):
            assert G.published >= min(lev, npair - 1), ("publish order", typ, lev, G.published)
            chk(G)
        G.top_hooks.setdefault(cs, []).append(hook)
        def addq(G, lev=lev): G.misc["hq"] = G.misc.get("hq", []) + hload_items(typ, lev)
        G.top_hooks.setdefault(cs, []).append(addq)
    G.post_items.setdefault(nP1 - 3, []).extend(setup_P2_addr())

def main():
    G = Gen()
    prologue(G)
    e = G.e
    st = {t: plan(t) for t in "AB"}
    seq = {t: alloc_seq(t, st[t]) for t in "AB"}
    hgs = {t: build_hgs(t, st[t]) for t in "AB"}
    for it in try_alloc(G, "A", st["A"], seq["A"], OPT["n0"] - 1): it[1](G)
    prologue_b(G)
    if not OPT["phase1_only"]: nonce_store(G)
    for it in try_alloc(G, "A", st["A"], seq["A"], OPT["n1"] - 1): it[1](G)
    e.wait_vm_token(max(G.unit_tok[(0, ui)] for ui in range(3)))
    e.barrier()
    G.certified = 0
    G.stamp()
    ds = deferred_setup()
    for i, it in enumerate(ds):
        G.post_items.setdefault(1 + i // 3, []).append(it)
    nw = 1
    if OPT["tw1"]:
        for pair, st0 in ((1, 2), (2, 4), (3, 7), (4, 9)):
            for piece in range(2):
                G.post_items.setdefault(st0 + piece, []).append(touch_w1_piece(pair, piece, nw % 7 + 1)); nw += 1
    G.post_items.setdefault(7, []).append(OT(cols_setup))
    if not OPT["phase1_only"]:
        if OPT["tw2"]:
            for piece in range(OPT["tw2n"]):
                G.post_items.setdefault(OPT["tw2"] + piece, []).append(touch_w2_piece(piece, OPT["tw2n"], nw % 7 + 1)); nw += 1
        iss, chk = poll(G, SDBG, 0, ACC[1] + 14, 0, "dbg")
        G.post_items.setdefault(("pre", 6), []).append((0, iss))
        G.top_hooks.setdefault(8, []).append(chk)
        G.post_items.setdefault(9, []).extend(setup_F_voffset())
    G.top_hooks.setdefault(8, []).append(lambda G: G.e.wait_vm_token(G.misc["btok"]))
    issue_hg_reads(G, hgs["A"], 2)
    emit_reads(G, 100)
    run_stages(G, "A", st["A"], seq["A"], hgs["A"], 0, 9)
    G.stamp()
    ncommon = 11
    run_stages(G, "A", st["A"], seq["A"], hgs["A"], 9, ncommon)
    assert seq["A"][:G.next_alloc] == seq["B"][:G.next_alloc] and all(st["A"][u[0]] == st["B"][u[0]] for u in seq["A"][:G.next_alloc])
    S_(e, "s_cmp_ge_u32 s%d, 2" % sNQ, S(sNQ), ["scc"])
    e.raw("s_cbranch_scc1 L_typeB"); e.pos += 1
    txt = e.text()
    for typ in "AB":
        Gx = G.fork(typ)
        npair = 4 if typ == "A" else 5
        nP1 = 9 + 3 * (npair - 1)
        if not OPT["phase1_only"]: schedule_polls(Gx, typ, st[typ])
        run_stages(Gx, typ, st[typ], seq[typ], hgs[typ], ncommon, nP1)
        Gx.stamp()
        if OPT["phase1_only"]:
            for h in Gx.top_hooks.pop(nP1, []): h(Gx)
            Gx.e.barrier()
            Gx.q = Gx.q + Gx.post_items.pop(nP1 - 1, []) + Gx.post_items.pop(nP1, [])
        else:
            run_stages(Gx, typ, st[typ], seq[typ], hgs[typ], nP1, nP1 + 9)
            Gx.stamp()
            run_stages(Gx, typ, st[typ], seq[typ], hgs[typ], nP1 + 9, nP1 + 12)
            Gx.stamp()
            final(Gx, typ, st[typ])
        finish(Gx)
        assert not Gx.top_hooks and not Gx.post_items, (Gx.top_hooks.keys(), Gx.post_items.keys())
        print(typ, Gx.e.stats, file=sys.stderr)
        if typ == "B": txt += "L_typeB:\n"
        txt += Gx.e.text()
    txt += "L_end:\n"
    out = file_text(["; @launch grid=(256,1,1) block=(512,1,1) lds=%d" % LDS_BYTES], [(KNAME, txt, 256, 102, 256)])
    open(sys.argv[1], "w").write(out)

if __name__ == "__main__":
    main()
```

```python
import sys, math, struct
from em16 import *
from asmlib import file_text

KNAME = "standalone__mixer_channel_mlp__prompt_kernel"
OPT = dict(phase1_only=0, stamps=0, rate=12, rot=1, nogelu=0, nocs=0, pf=1, spin=200000, nobar=0, nodma=0, nord=0, split=0, kchk=1, rdfast=1, ststamp=0, prio=0, vbudget=240, vpre=40, dmastep=6, fine=0, dmagap=7, adapt=1, trace=0, tr0=9, tr1=99, th=0, tw1=0, tw2=7, tw2n=6, hgap=3, early=1, hdbg=0, pubd=2, pub2=2, n0=2, n1=2, xla=4, rotm=0, fsleep=4, wla=7, pla=7, nopoll=0, nost=0, ladder=1, micro=1, cpf=1, tlb=0, tlbs=16, xsp=1, xgap=3, xlad=1, nt=0, vb=0, nomfma=0, vb0=10, vbh=4, vbd=4, vbprio=1, stq=0, stk=2, stm=0, pgap=7, soft=0, softw=0, twa=0, twp=2, ost=0)
for a in sys.argv[2:]:
    k, v = a.split("=")
    OPT[k] = int(v)

UNIT = 8192
NU = 19
L_PW = 0
L_SCR = 512
L_CS = 1024
L_ST = L_CS + 1024
L_B1 = L_ST + 2048
L_B2 = L_B1 + 1024
RING0 = UNIT
LDS_BYTES = (NU + 1) * UNIT
WS_PART = 0x1200000
WS_F1 = 0x2800000
WS_F2 = WS_F1 + 0x40000
WS_TS = 0x3000000
C0 = -2.0 * math.sqrt(2.0 / math.pi) * math.log2(math.e)
C1 = C0 * 0.044715
def f2u(x): return struct.unpack("<I", struct.pack("<f", x))[0]

SX, SW1, SW2, SWS, SOUT, SDBG, SB1, SB2 = 4, 8, 12, 16, 20, 24, 28, 32
sW, sTG, sG, sM, sKQ, sNQ, sWB = 36, 37, 38, 39, 40, 41, 42
sDBB = 43
sKW = 44; sKX = 53
sMK = 54
sT0, sT1 = 62, 63
sPB, sHB, sCSW, sCSR = 64, 65, 66, 67
sW2 = 68; sHL = 72
sPS, sLB, sSPIN, sB1A = 76, 77, 78, 79
sCOL = 80
sF1R, sF2R = 2, 3
sTS = 84; NSTAMP = 9
sWM = 98
sGM = 53
sD0, sD1, sH0 = 56, 57, 53
sE = 96
sNZ = 80
vA = 1
vDW, vDX, vDH = 5, 6, 7
vDF = vDX
vBC = 8
vT = 12
vK = 16
vAC = [22, 96]
AFR = 24; NHG = 3
ACC = [48, 64]
HOWN = 80
vONES = 88
vCS = 92
vX0, vX1 = 98, 99
vL16 = 100
vP2 = [5, 101, 102, 103]
vXA = [101, 102]
vQ = 104
vSY1 = 99
XF = 112
STG = [HOWN, HOWN + 4]
STS = [vQ, vQ + 4]
vTMP = ACC[1]

def X(c, kp, b): return XF + 16 * c + 8 * b + 4 * kp

class Gen:
    def __init__(self):
        self.e = Em()
        self.base = {}
        self.q = []
        self.credit = 0
        self.hg_issued = 0
        self.hgbuf = {}
        self.nbuf = 0
        self.unit_tok = {}
        self.unit_pos = {}
        self.free = list(range(1, NU + 1))
        self.next_alloc = 0
        self.nstamp = 0
        self.top_hooks = {}
        self.post_items = {}
        self.certified = -1
        self.nl = 0
        self.pub_pending = []
        self.published = -1
        self.misc = {}
        self.tag = ""
    def fork(self, tag):
        import copy
        g = Gen()
        g.e = self.e.fork()
        for k in ("base", "hgbuf", "unit_tok", "unit_pos", "misc"):
            setattr(g, k, dict(getattr(self, k)))
        for k in ("q", "free", "pub_pending"):
            setattr(g, k, list(getattr(self, k)))
        for k in ("credit", "hg_issued", "nbuf", "next_alloc", "nstamp", "certified", "nl", "published"):
            setattr(g, k, getattr(self, k))
        g.top_hooks = {k: list(v) for k, v in self.top_hooks.items()}
        g.post_items = {k: list(v) for k, v in self.post_items.items()}
        g.tag = tag
        return g
    def newlabel(self, p):
        self.nl += 1
        return "L%s_%s%d" % (self.tag, p, self.nl)
    def stamp(self, st=False):
        if OPT["ststamp"] and not st and self.nstamp > 0: return
        if OPT["stamps"] in (1, 3) and self.nstamp < NSTAMP:
            self.e.raw("s_memtime s[94:95]" if OPT["stamps"] == 1 else "s_memrealtime s[94:95]")
            self.e.pos += 1
            self.e._wait(lgkm=0)
            self.e.raw("s_mov_b32 s%d, s94" % (sTS + self.nstamp))
            self.nstamp += 1
    def trace(self, tmp):
        if not OPT["trace"]: return
        i = self.misc.get("ntrace", 0)
        assert i < 63
        self.misc["ntrace"] = i + 1
        e = self.e
        e.raw("s_memtime s[94:95]"); e.pos += 1
        e._wait(lgkm=0)
        e.valu("v_mov_b32 v%d, s94" % tmp, [], V(tmp))
        S_(e, "s_mov_b64 exec, %s" % sr(sWM, 2), S(sWM, 2), ["exec"])
        e.ins("ds_write_b32 v%d, v%d offset:%d" % (vL16, tmp, 6144 + (i // 4) * 128 + (i % 4) * 4), "dswrite", V(vL16) + V(tmp), [])
        S_(e, "s_mov_b64 exec, -1", [], ["exec"])
    def off(self, reg, const):
        b = self.base.get(reg, 0)
        if not (0 <= const - b <= 65535 - 16):
            nb = (const // UNIT) * UNIT
            d = (nb - b) & 0xffffffff
            self.e.valu("v_add_u32 v%d, 0x%x, v%d" % (reg, d, reg), V(reg), V(reg))
            self.credit -= 4
            self.base[reg] = nb
            b = nb
        return const - b
    def trread(self, dst, reg, const):
        o = self.off(reg, const)
        return self.e.ins("ds_read_b64_tr_b16 %s, v%d offset:%d" % (vr(dst, 2), reg, o), "dsread", V(reg), V(dst, 2))
    def fill(self):
        rate = OPT["rate"]
        dl = self.misc.get("deadline")
        if OPT["adapt"] and dl is not None:
            left = dl - self.misc.get("mcount", 0)
            qc = sum(it[0] if it[0] != "delay" else 0 for it in self.q)
            nd = sum(it[1] for it in self.q if it[0] == "delay")
            rate = qc / max(left - nd - 2, 1) + 0.05
            rate = max(rate, 4.0)
        self.credit = min(self.credit + rate, max(rate + 4, 8))
        nother = 0
        while self.q:
            it = self.q[0]
            if it[0] == "delay":
                if it[1] <= 1: self.q.pop(0)
                else: self.q[0] = ("delay", it[1] - 1)
                return
            cost, fn = it[0], it[1]
            if cost == 0:
                if nother >= 2: return
                nother += 1
            elif cost > self.credit:
                return
            self.q.pop(0)
            self.credit -= cost
            fn(self)
    def drain(self):
        while self.q:
            it = self.q.pop(0)
            if it[0] != "delay": it[1](self)
    def dma(self, lds_const, voff, srdreg, soff):
        e = self.e
        if OPT["nodma"] and self.misc.get("cur_stage", 0) > 5:
            fl = self.misc.pop("dma_filler", None)
            if fl: fl()
            return 0
        e.salu("s_add_u32 m0, s%d, %d" % (sWB, lds_const), S(sWB), ["m0"])
        fl = self.misc.pop("dma_filler", None)
        if fl: fl()
        ntf = " nt" if (OPT["nt"] >> {SX: 0, SW1: 1, SW2: 2}[srdreg]) & 1 else ""
        return e.ins("buffer_load_dwordx4 v%d, %s, s%d offen%s lds" % (voff, sr(srdreg, 4), soff, ntf), "dma",
                     V(voff) + S(srdreg, 4) + S(soff) + ["m0"], [])

def VA(text, rd, wr): return (4, lambda G: G.e.valu(text, rd, wr))
def TR(text, rd, wr): return (8, lambda G: G.e.trans(text, rd, wr))
def OT(fn): return (0, fn)

def S_(e, text, rd=(), wr=()): e.salu(text, rd, wr)

sROT = 81
sXB = 82

def srd(e, d, p, nbytes):
    S_(e, "s_mov_b32 s%d, s%d" % (d, p), [], S(d))
    S_(e, "s_mov_b32 s%d, s%d" % (d + 1, p + 1), [], S(d + 1))
    S_(e, "s_mov_b32 s%d, 0x%x" % (d + 2, nbytes), [], S(d + 2))
    S_(e, "s_mov_b32 s%d, 0x20000" % (d + 3), [], S(d + 3))

def chunk_entry(G, c):
    if c in G.misc.get("cent", ()): return
    G.misc["cent"] = G.misc.get("cent", frozenset()) | {c}
    e = G.e
    if c > 0:
        S_(e, "s_add_u32 s%d, s%d, 1" % (sROT, sROT), S(sROT), S(sROT))
        S_(e, "s_cmp_eq_u32 s%d, 9" % sROT, S(sROT), ["scc"])
        S_(e, "s_cselect_b32 s%d, 0, s%d" % (sROT, sROT), S(sROT), S(sROT))
    S_(e, "s_mul_i32 s%d, s%d, %d" % (sKW + c, sROT, 64 * 9216), S(sROT), S(sKW + c))
    S_(e, "s_lshl_b32 s%d, s%d, 7" % (sKX + c, sROT), S(sROT), S(sKX + c))
    S_(e, "s_add_u32 s%d, s%d, s%d" % (sKX + c, sKX + c, sXB), S(sKX + c) + S(sXB), S(sKX + c))

def prologue(G):
    e = G.e
    e.raw("s_cmp_ge_u32 s2, 256"); e.raw("s_cbranch_scc1 L_end")
    e.raw("s_load_dwordx16 s[64:79], s[0:1], 0")
    if OPT["stamps"]:
        e.raw("s_memrealtime s[100:101]")
    if OPT["trace"]: e.raw("s_memtime s[92:93]")
    e.raw("s_memrealtime s[%d:%d]" % (sE, sE + 1))
    e.valu("v_lshrrev_b32 v1, 6, v0", V(0), V(1))
    e.valu("v_and_b32 v0, 63, v0", V(0), V(0))
    e.ins("v_readfirstlane_b32 s%d, v1" % sW, "readlane", V(1), S(sW))
    S_(e, "s_and_b32 s%d, s2, 3" % sKQ, [], S(sKQ))
    S_(e, "s_lshr_b32 s%d, s2, 3" % sT0, [], S(sT0))
    S_(e, "s_and_b32 s%d, s%d, 3" % (sNQ, sT0), S(sT0), S(sNQ))
    S_(e, "s_lshr_b32 s%d, s%d, 2" % (sT0, sT0), S(sT0), S(sT0))
    S_(e, "s_lshl_b32 s%d, s2, 1" % sM, [], S(sM))
    S_(e, "s_and_b32 s%d, s%d, 8" % (sM, sM), S(sM), S(sM))
    S_(e, "s_add_u32 s%d, s%d, s%d" % (sM, sM, sT0), S(sM) + S(sT0), S(sM))
    S_(e, "s_lshl_b32 s%d, s%d, 10" % (sWB, sW), S(sW), S(sWB))
    if OPT["rot"]:
        S_(e, "s_lshl1_add_u32 s%d, s%d, s%d" % (sROT, sNQ, sT0), S(sNQ) + S(sT0), S(sROT))
        if OPT["rotm"]:
            S_(e, "s_lshr_b32 s%d, s%d, 1" % (sT1, sNQ), S(sNQ), S(sT1))
            S_(e, "s_add_u32 s%d, s%d, s%d" % (sROT, sROT, sT1), S(sROT) + S(sT1), S(sROT))
        S_(e, "s_sub_u32 s%d, s%d, 9" % (sT0, sROT), S(sROT), S(sT0))
        S_(e, "s_cmp_ge_u32 s%d, 9" % sROT, S(sROT), ["scc"])
        S_(e, "s_cselect_b32 s%d, s%d, s%d" % (sROT, sT0, sROT), S(sT0) + S(sROT), S(sROT))
    else:
        S_(e, "s_mov_b32 s%d, 0" % sROT, [], S(sROT))
    S_(e, "s_mul_i32 s%d, s%d, %d" % (sXB, sM, 128 * 1152), S(sM), S(sXB))
    chunk_entry(G, 0)
    t = vTMP
    e.valu("v_lshrrev_b32 v%d, 3, v0" % t, V(0), V(t))
    e.valu("v_and_b32 v%d, 7, v0" % (t + 1), V(0), V(t + 1))
    e.valu("v_lshrrev_b32 v%d, 1, v%d" % (t + 2, t), V(t), V(t + 2))
    S_(e, "s_and_b32 s%d, s%d, 1" % (sT0, sW), S(sW), S(sT0))
    S_(e, "s_lshl_b32 s%d, s%d, 2" % (sT1, sT0), S(sT0), S(sT1))
    e.valu("v_or_b32 v%d, s%d, v%d" % (t + 3, sT1, t + 2), S(sT1) + V(t + 2), V(t + 3))
    e.valu("v_xor_b32 v%d, v%d, v%d" % (t + 3, t + 3, t + 1), V(t + 3) + V(t + 1), V(t + 3))
    S_(e, "s_lshl_b32 s%d, s%d, 3" % (sT1, sW), S(sW), S(sT1))
    e.valu("v_add_u32 v%d, s%d, v%d" % (t + 4, sT1, t), S(sT1) + V(t), V(t + 4))
    e.valu("v_mul_u32_u24 v%d, 1152, v%d" % (vDX, t + 4), V(t + 4), V(vDX))
    e.valu("v_lshl_add_u32 v%d, v%d, 4, v%d" % (vDX, t + 3, vDX), V(t + 3) + V(vDX), V(vDX))
    e.valu("v_bfe_u32 v%d, v0, 2, 3" % t, V(0), V(t))
    e.valu("v_add_u32 v%d, s%d, v%d" % (t, sT1, t), S(sT1) + V(t), V(t))
    e.valu("v_mul_u32_u24 v%d, 9216, v%d" % (vDW, t), V(t), V(vDW))
    e.valu("v_lshrrev_b32 v%d, 5, v0" % (t + 1), V(0), V(t + 1))
    e.valu("v_lshl_add_u32 v%d, v%d, 6, v%d" % (vDW, t + 1, vDW), V(t + 1) + V(vDW), V(vDW))
    S_(e, "s_lshl_b32 s%d, s%d, 1" % (sT0, sT0), S(sT0), S(sT0))
    e.valu("v_and_b32 v%d, 3, v0" % (t + 2), V(0), V(t + 2))
    e.valu("v_xor_b32 v%d, s%d, v%d" % (t + 2, sT0, t + 2), S(sT0) + V(t + 2), V(t + 2))
    e.valu("v_lshl_add_u32 v%d, v%d, 4, v%d" % (vDW, t + 2, vDW), V(t + 2) + V(vDW), V(vDW))
    S_(e, "s_cmp_eq_u32 s%d, 3" % sNQ, S(sNQ), ["scc"])
    S_(e, "s_cselect_b32 s%d, 1, 0" % sT0, [], S(sT0))
    S_(e, "s_lshl2_add_u32 s3, s%d, s%d" % (sNQ, sT0), S(sNQ) + S(sT0), S(3))
    S_(e, "s_mul_i32 s%d, s%d, 5" % (sDBB, sNQ), S(sNQ), S(sDBB))
    S_(e, "s_sub_u32 s%d, s%d, s%d" % (sDBB, sDBB, sT0), S(sDBB) + S(sT0), S(sDBB))
    S_(e, "s_lshl_b32 s%d, s%d, 6" % (sDBB, sDBB), S(sDBB), S(sDBB))
    S_(e, "s_mul_i32 s%d, s%d, 2304" % (sT0, sKQ), S(sKQ), S(sT0))
    S_(e, "s_lshl_b32 s%d, s3, 7" % sT1, S(3), S(sT1))
    S_(e, "s_add_u32 s83, s%d, s%d" % (sT0, sT1), S(sT0) + S(sT1), S(83))
    e.valu("v_add_u32 v%d, s83, v%d" % (vDW, vDW), S(83) + V(vDW), V(vDW))
    S_(e, "s_mov_b32 s%d, 0x%x" % (SX + 2, 2048 * 576 * 2), [], S(SX + 2))
    S_(e, "s_mov_b32 s%d, 0x20000" % (SX + 3), [], S(SX + 3))
    S_(e, "s_mov_b32 s%d, 0x%x" % (SW1 + 2, 576 * 4608 * 2), [], S(SW1 + 2))
    S_(e, "s_mov_b32 s%d, 0x20000" % (SW1 + 3), [], S(SW1 + 3))
    e.raw("s_waitcnt lgkmcnt(0)"); e.pos += 1
    S_(e, "s_mov_b64 %s, s[64:65]" % sr(SX, 2), [], S(SX, 2))
    S_(e, "s_mov_b64 %s, s[66:67]" % sr(SW1, 2), [], S(SW1, 2))
    G.stamp()

def prologue_b(G):
    e = G.e
    t = vTMP
    S_(e, "s_and_b32 s%d, s%d, 3" % (sTG, sW), S(sW), S(sTG))
    S_(e, "s_lshr_b32 s%d, s%d, 2" % (sG, sW), S(sW), S(sG))
    e.valu("v_lshlrev_b32 v%d, 4, v0" % vL16, V(0), V(vL16))
    sRHO = sWM
    S_(e, "s_and_b32 s%d, s%d, 1" % (sRHO, sTG), S(sTG), S(sRHO))
    S_(e, "s_xor_b32 s%d, s%d, s%d" % (sRHO, sRHO, sG), S(sRHO) + S(sG), S(sRHO))
    e.valu("v_lshrrev_b32 v%d, 4, v0" % t, V(0), V(t))
    e.valu("v_bfe_u32 v%d, v0, 2, 2" % (t + 1), V(0), V(t + 1))
    e.valu("v_and_b32 v%d, 3, v0" % (t + 2), V(0), V(t + 2))
    e.valu("v_and_b32 v%d, 1, v%d" % (t + 3, t), V(t), V(t + 3))
    e.valu("v_lshlrev_b32 v%d, 10, v%d" % (t + 4, t), V(t), V(t + 4))
    e.valu("v_lshl_add_u32 v%d, v%d, 6, v%d" % (t + 4, t + 1, t + 4), V(t + 1) + V(t + 4), V(t + 4))
    e.valu("v_lshl_add_u32 v%d, v%d, 3, v%d" % (t + 4, t + 2, t + 4), V(t + 2) + V(t + 4), V(t + 4))
    S_(e, "s_lshr_b32 s%d, s%d, 1" % (sT0, sTG), S(sTG), S(sT0))
    e.valu("v_xor_b32 v%d, s%d, v%d" % (t + 3, sT0, t + 3), S(sT0) + V(t + 3), V(t + 3))
    e.valu("v_lshl_add_u32 v%d, v%d, 5, v%d" % (t + 5, t + 3, t + 4), V(t + 3) + V(t + 4), V(t + 5))
    e.valu("v_xor_b32 v%d, 32, v%d" % (t + 6, t + 5), V(t + 5), V(t + 6))
    for kp in range(2):
        S_(e, "s_xor_b32 s%d, s%d, %d" % (sT0, sRHO, kp), S(sRHO), S(sT0))
        S_(e, "s_lshl_b32 s%d, s%d, 12" % (sT0, sT0), S(sT0), S(sT0))
        S_(e, "s_lshl_b32 s%d, s%d, 9" % (sT1, sG), S(sG), S(sT1))
        S_(e, "s_add_u32 s%d, s%d, s%d" % (sT0, sT0, sT1), S(sT0) + S(sT1), S(sT0))
        for a in range(2):
            e.valu("v_add_u32 v%d, s%d, v%d" % (vA + 2 * a + kp, sT0, t + 5 + a), S(sT0) + V(t + 5 + a), V(vA + 2 * a + kp))
    e.valu("v_and_b32 v%d, 15, v0" % (t + 1), V(0), V(t + 1))
    e.valu("v_lshrrev_b32 v%d, 1, v%d" % (t + 2, t + 1), V(t + 1), V(t + 2))
    e.valu("v_xor_b32 v%d, v%d, v%d" % (t + 2, t + 2, t), V(t + 2) + V(t), V(t + 2))
    S_(e, "s_lshl_b32 s%d, s%d, 12" % (sT0, sTG), S(sTG), S(sT0))
    e.valu("v_lshlrev_b32 v%d, 7, v%d" % (t + 1, t + 1), V(t + 1), V(t + 1))
    e.valu("v_add_u32 v%d, s%d, v%d" % (t + 1, sT0, t + 1), S(sT0) + V(t + 1), V(t + 1))
    for kp in range(2):
        S_(e, "s_xor_b32 s%d, s%d, %d" % (sT0, sRHO, kp), S(sRHO), S(sT0))
        S_(e, "s_lshl_b32 s%d, s%d, 2" % (sT0, sT0), S(sT0), S(sT0))
        e.valu("v_xor_b32 v%d, s%d, v%d" % (t + 3, sT0, t + 2), S(sT0) + V(t + 2), V(t + 3))
        e.valu("v_lshl_add_u32 v%d, v%d, 4, v%d" % (vXA[kp], t + 3, t + 1), V(t + 3) + V(t + 1), V(vXA[kp]))
    for i in range(4):
        e.valu("v_mov_b32 v%d, 0x3f803f80" % (vONES + i), [], V(vONES + i))
    S_(e, "s_lshl_b64 %s, 1, s%d" % (sr(sWM, 2), sW), S(sW), S(sWM, 2))
    srd(e, SWS, 78, 0x4000000)
    srd(e, SDBG, 76, 256)
    S_(e, "s_or_b32 s%d, s2, s%d" % (sNZ, sW), S(sW), S(sNZ))

def deferred_setup():
    L = []
    def f1(G):
        e = G.e
        srd(e, SB1, 68, 4608 * 2); srd(e, SB2, 72, 576 * 2)
        S_(e, "s_mov_b32 m0, %d" % L_B1, [], ["m0"])
        e.ins("buffer_load_dwordx4 v%d, %s, s83 offen lds" % (vL16, sr(SB1, 4)), "dma", V(vL16) + S(SB1, 4) + S(83) + ["m0"], [])
        S_(e, "s_mov_b32 m0, %d" % L_B2, [], ["m0"])
        G.misc["btok"] = e.ins("buffer_load_dwordx4 v%d, %s, s%d offen lds" % (vL16, sr(SB2, 4), sDBB), "dma", V(vL16) + S(SB2, 4) + S(sDBB) + ["m0"], [])
    L.append(f1)
    def f2(G):
        e = G.e
        srd(e, SW2, 70, 4608 * 576 * 2); srd(e, SOUT, 74, 2048 * 576 * 2)
        S_(e, "s_mov_b32 s%d, s3" % sPB, S(3), S(sPB))
        S_(e, "s_cmp_ge_u32 s%d, 2" % sTG, S(sTG), ["scc"])
        S_(e, "s_cselect_b64 vcc, -1, 0", [], ["vcc"])
    L.append(f2)
    def f3(G):
        e = G.e
        S_(e, "s_lshl2_add_u32 s%d, s%d, s%d" % (sT0, sM, sKQ), S(sM) + S(sKQ), S(sT0))
        S_(e, "s_lshl2_add_u32 s%d, s%d, s%d" % (sT0, sT0, sNQ), S(sT0) + S(sNQ), S(sT0))
        S_(e, "s_lshl_b32 s%d, s%d, 7" % (sT0, sT0), S(sT0), S(sT0))
        S_(e, "s_add_u32 s%d, s%d, 0x%x" % (sF1R, sT0, WS_F1), S(sT0), S(sF1R))
        S_(e, "s_lshl2_add_u32 s%d, s%d, s%d" % (sT0, sM, sNQ), S(sM) + S(sNQ), S(sT0))
        S_(e, "s_lshl2_add_u32 s%d, s%d, s%d" % (sT0, sT0, sKQ), S(sT0) + S(sKQ), S(sT0))
        S_(e, "s_lshl_b32 s%d, s%d, 7" % (sT0, sT0), S(sT0), S(sT0))
        S_(e, "s_add_u32 s%d, s%d, 0x%x" % (sF2R, sT0, WS_F2), S(sT0), S(sF2R))
    L.append(f3)
    def f4(G):
        e = G.e
        S_(e, "s_lshl_b32 s%d, s%d, 8" % (sCSR, sG), S(sG), S(sCSR))
        S_(e, "s_add_u32 s%d, s%d, %d" % (sCSR, sCSR, L_CS), S(sCSR), S(sCSR))
        S_(e, "s_lshl2_add_u32 s%d, s%d, s%d" % (sCSW, sTG, sCSR), S(sTG) + S(sCSR), S(sCSW))
        S_(e, "s_lshr_b32 s%d, s%d, 1" % (sT0, sTG), S(sTG), S(sT0))
        S_(e, "s_lshl3_add_u32 s%d, s%d, s%d" % (sCSR, sT0, sCSR), S(sT0) + S(sCSR), S(sCSR))
        S_(e, "s_lshl1_add_u32 s%d, s%d, s%d" % (sB1A, sG, sT0), S(sG) + S(sT0), S(sB1A))
        S_(e, "s_lshl_b32 s%d, s%d, 5" % (sB1A, sB1A), S(sB1A), S(sB1A))
        S_(e, "s_add_u32 s%d, s%d, %d" % (sB1A, sB1A, L_B1), S(sB1A), S(sB1A))
    L.append(f4)
    def f5(G):
        e = G.e
        S_(e, "s_mul_i32 s%d, s%d, 36" % (sT0, sKQ), S(sKQ), S(sT0))
        S_(e, "s_add_u32 s%d, s%d, s%d" % (sT0, sT0, sG), S(sT0) + S(sG), S(sT0))
        S_(e, "s_mul_i32 s%d, s%d, 144" % (sT1, sM), S(sM), S(sT1))
        S_(e, "s_add_u32 s%d, s%d, s%d" % (sT0, sT0, sT1), S(sT0) + S(sT1), S(sT0))
        S_(e, "s_lshl2_add_u32 s%d, s%d, s%d" % (sT0, sT0, sTG), S(sT0) + S(sTG), S(sT0))
        S_(e, "s_lshl_b32 s%d, s%d, 11" % (sHB, sT0), S(sT0), S(sHB))
        S_(e, "s_mul_i32 s%d, s%d, %d" % (sPS, sKQ, 1152 * 1152), S(sKQ), S(sPS))
    L.append(f5)
    for k in range(4):
        def f6(G, k=k):
            e = G.e
            n = sT0
            if k == 0: S_(e, "s_mov_b32 s%d, s%d" % (n, sNQ), S(sNQ), S(n))
            elif k == 1: S_(e, "s_xor_b32 s%d, s%d, 1" % (n, sNQ), S(sNQ), S(n))
            else:
                S_(e, "s_xor_b32 s%d, s%d, 2" % (n, sNQ), S(sNQ), S(n))
                S_(e, "s_and_b32 s%d, s%d, 2" % (n, n), S(n), S(n))
                if k == 3: S_(e, "s_add_u32 s%d, s%d, 1" % (n, n), S(n), S(n))
            S_(e, "s_cmp_eq_u32 s%d, 3" % n, S(n), ["scc"])
            S_(e, "s_cselect_b32 s%d, 1, 0" % sT1, [], S(sT1))
            S_(e, "s_lshl2_add_u32 s%d, s%d, s%d" % (n, n, sT1), S(n) + S(sT1), S(n))
            S_(e, "s_lshl_b32 s%d, s%d, 14" % (sHL + k, n), S(n), S(sHL + k))
            S_(e, "s_add_u32 s%d, s%d, s%d" % (sHL + k, sHL + k, sHB), S(sHL + k) + S(sHB), S(sHL + k))
            S_(e, "s_mul_i32 s%d, s%d, %d" % (sW2 + k, n, 64 * 1152), S(n), S(sW2 + k))
            S_(e, "s_add_u32 s%d, s%d, s%d" % (sW2 + k, sW2 + k, sPS), S(sW2 + k) + S(sPS), S(sW2 + k))
            if k == 3: S_(e, "s_mov_b32 s%d, s%d" % (sHB, sHL), S(sHL), S(sHB))
        L.append(f6)
    def f8(G):
        e = G.e
        S_(e, "s_lshl2_add_u32 s%d, s%d, s%d" % (sT0, sM, sNQ), S(sM) + S(sNQ), S(sT0))
        S_(e, "s_mul_i32 s%d, s%d, 160" % (sT0, sT0), S(sT0), S(sT0))
        S_(e, "s_lshl3_add_u32 s%d, s%d, s%d" % (sT0, sTG, sT0), S(sTG) + S(sT0), S(sT0))
        S_(e, "s_add_u32 s%d, s%d, s%d" % (sT0, sT0, sG), S(sT0) + S(sG), S(sT0))
        S_(e, "s_lshl_b32 s%d, s%d, 11" % (sT0, sT0), S(sT0), S(sT0))
        S_(e, "s_add_u32 s%d, s%d, 0x%x" % (sPS, sT0, WS_PART), S(sT0), S(sPS))
    L.append(f8)
    def f9(G):
        e = G.e
        t = vTMP
        e.valu("v_bfe_u32 v%d, v0, 4, 1" % t, V(0), V(t))
        e.valu("v_lshlrev_b32 v%d, 1, v%d" % (t, t), V(t), V(t))
        e.valu("v_and_b32 v%d, 3, v0" % (t + 1), V(0), V(t + 1))
        e.valu("v_xor_b32 v%d, v%d, v%d" % (t, t, t + 1), V(t, 2), V(t))
        S_(e, "s_and_b32 s%d, s%d, 1" % (sT0, sTG), S(sTG), S(sT0))
        S_(e, "s_lshl1_add_u32 s%d, s%d, s%d" % (sT0, sG, sT0), S(sG) + S(sT0), S(sT0))
        S_(e, "s_lshl_b32 s%d, s%d, 4" % (sT0, sT0), S(sT0), S(sT0))
        e.valu("v_lshrrev_b32 v%d, 2, v0" % (t + 1), V(0), V(t + 1))
        e.valu("v_add_u32 v%d, s%d, v%d" % (t + 1, sT0, t + 1), S(sT0) + V(t + 1), V(t + 1))
        e.valu("v_mul_u32_u24 v%d, 1152, v%d" % (vDH, t + 1), V(t + 1), V(vDH))
        e.valu("v_lshl_add_u32 v%d, v%d, 4, v%d" % (vDH, t, vDH), V(t) + V(vDH), V(vDH))
    L.append(f9)
    return [OT(f) for f in L]

def cols_setup(G):
    e = G.e
    assert len(G.misc["cent"]) == 9
    S_(e, "s_cmp_eq_u32 s%d, 1" % sNQ, S(sNQ), ["scc"])
    S_(e, "s_cselect_b32 s%d, 64, 0" % sLB, [], S(sLB))
    S_(e, "s_add_u32 s%d, s%d, 256" % (sCOL + 2, sLB), S(sLB), S(sCOL + 2))
    S_(e, "s_add_u32 s%d, s%d, s%d" % (sLB, sLB, sDBB), S(sLB) + S(sDBB), S(sLB))
    S_(e, "s_xor_b32 s%d, s%d, 2" % (sT0, sKQ), S(sKQ), S(sT0))
    S_(e, "s_and_b32 s%d, s%d, 2" % (sT0, sT0), S(sT0), S(sT0))
    S_(e, "s_lshl_b32 s%d, s%d, 6" % (sT0, sT0), S(sT0), S(sT0))
    S_(e, "s_add_u32 s%d, s%d, s%d" % (sCOL, sT0, sLB), S(sT0) + S(sLB), S(sCOL))
    S_(e, "s_xor_b32 s%d, s%d, 1" % (sT0, sKQ), S(sKQ), S(sT0))
    S_(e, "s_lshl_b32 s%d, s%d, 6" % (sT0, sT0), S(sT0), S(sT0))
    S_(e, "s_add_u32 s%d, s%d, s%d" % (sCOL + 1, sT0, sLB), S(sT0) + S(sLB), S(sCOL + 1))
    S_(e, "s_lshl_b32 s%d, s%d, 6" % (sT0, sKQ), S(sKQ), S(sT0))
    S_(e, "s_add_u32 s%d, s%d, s%d" % (sCOL + 3, sT0, sLB), S(sT0) + S(sLB), S(sCOL + 3))

def dw_block(G, lines, regs=(), sreg=None, wave=0):
    e = G.e
    e._autowait(list(regs))
    e.nop(max(e._need("valu", list(regs), list(regs), "x"), 0))
    lab = G.newlabel("dw")
    e.raw("s_cmp_eq_u32 s%d, %d" % (sW if sreg is None else sreg, wave)); e.raw("s_cbranch_scc0 %s" % lab); e.pos += 2
    for l in lines:
        if l.endswith(":"): e.label(l[:-1])
        else: e.raw(l)
    e.label(lab)
    for r in regs: e.lastw[r] = ("valu", e.pos - 1, None)

def flag_store(G, srdreg, sread, sown, val, tmp):
    dw_block(G, ["s_add_u32 s%d, s%d, %d" % (sT1, sE, val),
                 "v_mov_b32 v%d, s%d" % (tmp, sT1),
                 "v_mov_b32 v%d, s%d" % (tmp + 1, sE + 1),
                 "s_mul_i32 s%d, s%d, 120" % (sT0, sown),
                 "s_sub_u32 s%d, s%d, s%d" % (sT0, sread, sT0),
                 "s_lshl_b32 s%d, s%d, 3" % (sT1, sown),
                 "s_lshl_b32 s%d, 1, s%d" % (sT1, sT1),
                 "s_andn2_b32 exec_lo, 0x01010101, s%d" % sT1,
                 "s_mov_b32 exec_hi, 0",
                 "buffer_store_dwordx2 %s, v%d, %s, s%d offen sc1" % (vr(tmp, 2), vL16, sr(srdreg, 4), sT0),
                 "s_mov_b64 exec, -1"], V(tmp, 2))

def nonce_store(G):
    t = vTMP
    dw_block(G, ["s_and_b32 s%d, s%d, 0xfffffff0" % (sE, sE),
                 "s_or_b32 s%d, s%d, 0x80000000" % (sE + 1, sE + 1),
                 "v_mov_b32 v%d, s%d" % (t, sE),
                 "v_mov_b32 v%d, s%d" % (t + 1, sE + 1),
                 "s_mov_b64 exec, 1",
                 "buffer_store_dwordx2 %s, off, %s, 0 sc1" % (vr(t, 2), sr(SDBG, 4)),
                 "s_mov_b64 exec, -1"], V(t, 2), sreg=sNZ)

def touch(G, vaddr, srdreg, soff, mask_lo, mask_hi):
    e = G.e
    S_(e, "s_mov_b32 m0, %d" % L_SCR, [], ["m0"])
    S_(e, "s_mov_b32 exec_lo, 0x%x" % mask_lo, [], ["exec"])
    S_(e, "s_mov_b32 exec_hi, 0x%x" % mask_hi, [], ["exec"])
    tok = e.ins("buffer_load_dword v%d, %s, s%d offen lds" % (vaddr, sr(srdreg, 4), soff), "dma", V(vaddr) + S(srdreg, 4) + S(soff) + ["m0"], [])
    S_(e, "s_mov_b64 exec, -1", [], ["exec"])
    return tok

def touch_lines(nl):
    m = (1 << nl) - 1
    return ["s_mov_b32 m0, %d" % L_SCR, "s_mov_b32 exec_lo, 0x%x" % (m & 0xffffffff), "s_mov_b32 exec_hi, 0x%x" % (m >> 32)]

def touch_w1_piece(pair, piece, wave):
    t = vX1
    def f(G):
        dw_block(G, ["v_mul_u32_u24 v%d, 9216, v0" % t,
                     "s_and_b32 s%d, s%d, 7" % (sT0, sM),
                     "s_mul_i32 s%d, s%d, %d" % (sT0, sT0, 72 * 9216),
                     "s_mul_i32 s%d, s%d, 2304" % (sT1, sKQ),
                     "s_add_u32 s%d, s%d, s%d" % (sT0, sT0, sT1),
                     "s_lshl_b32 s%d, s%d, 7" % (sT1, sPB),
                     "s_add_u32 s%d, s%d, s%d" % (sT0, sT0, sT1),
                     "s_add_u32 s%d, s%d, %d" % (sT0, sT0, piece * 36 * 9216 + pair * 128)] + touch_lines(36) +
                    ["buffer_load_dword v%d, %s, s%d offen lds" % (t, sr(SW1, 4), sT0), "s_mov_b64 exec, -1"], V(t), wave=wave)
    return OT(f)

def tlb_items():
    t = vX1
    sh = OPT["tlbs"]
    L = []
    def mk(srdreg, setup, nbytes, wave):
        nl = min(64, -(-nbytes >> sh) + 1)
        def f(G):
            dw_block(G, ["v_lshlrev_b32 v%d, %d, v0" % (t, sh)] + setup + touch_lines(nl) +
                     ["buffer_load_dword v%d, %s, s%d offen lds" % (t, sr(srdreg, 4), sT0), "s_mov_b64 exec, -1"], V(t), wave=wave)
        L.append(OT(f))
    mk(SWS, ["s_lshl2_add_u32 s%d, s%d, s%d" % (sT0, sM, sKQ), "s_mul_i32 s%d, s%d, %d" % (sT0, sT0, 36 * 8192)], 36 * 8192, 3)
    mk(SWS, ["s_lshl2_add_u32 s%d, s%d, s%d" % (sT0, sM, sNQ), "s_mul_i32 s%d, s%d, %d" % (sT0, sT0, 160 * 2048),
             "s_add_u32 s%d, s%d, 0x%x" % (sT0, sT0, WS_PART)], 160 * 2048, 5)
    mk(SOUT, ["s_mul_i32 s%d, s%d, %d" % (sT0, sM, 128 * 1152)], 128 * 1152, 6)
    return L

def touch_w2_pieceA(piece, wave):
    t = vX1
    def f(G):
        e = G.e
        S_(e, "s_and_b32 s%d, s%d, 2" % (sT0, sNQ), S(sNQ), S(sT0))
        S_(e, "s_lshl2_add_u32 s%d, s%d, s%d" % (sT0, sT0, sW), S(sT0) + S(sW), S(sT0))
        dw_block(G, ["v_lshlrev_b32 v%d, 7, v0" % t,
                     "s_and_b32 s%d, s%d, 7" % (sT0, sM),
                     "s_lshl1_add_u32 s%d, s%d, s%d" % (sT0, sT0, sNQ),
                     "s_mul_i32 s%d, s%d, %d" % (sT0, sT0, 648 * 128),
                     "s_mul_i32 s%d, s%d, %d" % (sT1, sKQ, 1152 * 1152),
                     "s_add_u32 s%d, s%d, s%d" % (sT0, sT0, sT1),
                     "s_add_u32 s%d, s%d, %d" % (sT0, sT0, piece * 54 * 128)] + touch_lines(54) +
                    ["buffer_load_dword v%d, %s, s%d offen lds" % (t, sr(SW2, 4), sT0), "s_mov_b64 exec, -1"], V(t), sreg=sT0, wave=wave)
    return OT(f)

def touch_w2_piece(piece, npiece, wave):
    nl = min(-(-324 // npiece), 64)
    t = vX1
    def f(G):
        dw_block(G, ["v_lshlrev_b32 v%d, 7, v0" % t,
                     "s_and_b32 s%d, s%d, 7" % (sT0, sM),
                     "s_lshl2_add_u32 s%d, s%d, s%d" % (sT0, sT0, sNQ),
                     "s_mul_i32 s%d, s%d, %d" % (sT0, sT0, 324 * 128),
                     "s_mul_i32 s%d, s%d, %d" % (sT1, sKQ, 1152 * 1152),
                     "s_add_u32 s%d, s%d, s%d" % (sT0, sT0, sT1),
                     "s_add_u32 s%d, s%d, %d" % (sT0, sT0, piece * nl * 128)] + touch_lines(nl) +
                    ["buffer_load_dword v%d, %s, s%d offen%s lds" % (t, sr(SW2, 4), sT0, " nt" if OPT["nt"] & 8 else ""), "s_mov_b64 exec, -1"], V(t), wave=wave)
    return OT(f)

def init_progress(G):
    e = G.e
    S_(e, "s_lshl_b64 %s, 1, s%d" % (sr(sWM, 2), sW), S(sW), S(sWM, 2))
    S_(e, "s_mov_b64 exec, %s" % sr(sWM, 2), S(sWM, 2), ["exec"])
    tok = e.ins("ds_write_b32 v%d, v%d offset:%d" % (vL16, vX0, L_PW), "dswrite", V(vL16) + V(vX0), [])
    S_(e, "s_lshl_b32 s%d, s%d, 2" % (sT0, sG), S(sG), S(sT0))
    S_(e, "s_lshl_b32 s%d, 15, s%d" % (sGM, sT0), S(sT0), S(sGM))
    S_(e, "s_mov_b64 exec, -1", [], ["exec"])
    return tok

def arrive(G, s, tmp):
    e = G.e
    e.valu("v_mov_b32 v%d, %d" % (tmp, s + 1), [], V(tmp))
    S_(e, "s_mov_b64 exec, %s" % sr(sWM, 2), S(sWM, 2), ["exec"])
    e.ins("ds_write_b32 v%d, v%d offset:%d" % (vL16, tmp, L_PW), "dswrite", V(vL16) + V(tmp), [])
    S_(e, "s_mov_b64 exec, -1", [], ["exec"])

def sync_issue(G, tmp):
    G.e.ins("ds_read_b32 v%d, v%d offset:%d" % (tmp, vL16, L_PW), "dsread", V(vL16), V(tmp))

def sync_check(G, s, tmp, sameg=False):
    e = G.e
    pr = sMK + 6
    pr2 = sMK + 4
    lok = G.newlabel("bk"); lsp = G.newlabel("bs")
    def cond(raw):
        if raw:
            e.raw("v_cmp_gt_u32 %s, %d, v%d" % (sr(pr, 2), s + 1, tmp))
            if sameg: e.raw("v_cmp_gt_u32 %s, %d, v%d" % (sr(pr2, 2), s + 2, tmp))
            e.raw("s_nop 3")
            if sameg:
                e.raw("s_and_b32 s%d, s%d, s%d" % (pr2, pr2, sGM)); e.raw("s_or_b32 s%d, s%d, s%d" % (pr, pr, pr2))
            e.raw("s_and_b32 s%d, s%d, 0xff" % (pr, pr))
        else:
            e.valu("v_cmp_gt_u32 %s, %d, v%d" % (sr(pr, 2), s + 1, tmp), V(tmp), S(pr, 2))
            if sameg:
                e.valu("v_cmp_gt_u32 %s, %d, v%d" % (sr(pr2, 2), s + 2, tmp), V(tmp), S(pr2, 2))
                S_(e, "s_and_b32 s%d, s%d, s%d" % (pr2, pr2, sGM), S(pr2) + S(sGM), S(pr2))
                S_(e, "s_or_b32 s%d, s%d, s%d" % (pr, pr, pr2), S(pr) + S(pr2), S(pr))
            S_(e, "s_and_b32 s%d, s%d, 0xff" % (pr, pr), S(pr), S(pr) + ["scc"])
    cond(False)
    e.raw("s_cbranch_scc0 %s" % lok); e.pos += 1
    e.label(lsp)
    e.raw("s_sleep 1")
    e.raw("ds_read_b32 v%d, v%d offset:%d" % (tmp, vL16, L_PW))
    e.raw("s_waitcnt lgkmcnt(0)")
    cond(True)
    e.raw("s_cbranch_scc1 %s" % lsp)
    e.label(lok)

def setup_F_voffset():
    a, b = vQ + 2, vQ + 3
    L = []
    L.append(VA("v_bfe_u32 v%d, v0, 2, 3" % a, V(0), V(a)))
    L.append(VA("v_lshl_add_u32 v%d, s%d, 3, v%d" % (a, sW, a), S(sW) + V(a), V(a)))
    L.append(VA("v_mul_u32_u24 v%d, 1152, v%d" % (vDF, a), V(a), V(vDF)))
    L.append(VA("v_lshrrev_b32 v%d, 5, v0" % a, V(0), V(a)))
    L.append(VA("v_lshl_add_u32 v%d, v%d, 6, v%d" % (vDF, a, vDF), V(a) + V(vDF), V(vDF)))
    L.append(VA("v_bfe_u32 v%d, v0, 4, 1" % a, V(0), V(a)))
    L.append(VA("v_lshlrev_b32 v%d, 1, v%d" % (a, a), V(a), V(a)))
    L.append(VA("v_and_b32 v%d, 3, v0" % b, V(0), V(b)))
    L.append(VA("v_xor_b32 v%d, v%d, v%d" % (a, a, b), V(a) + V(b), V(a)))
    L.append(VA("v_lshl_add_u32 v%d, v%d, 4, v%d" % (vDF, a, vDF), V(a) + V(vDF), V(vDF)))
    L.append(OT(lambda G: G.misc.__setitem__("F_ready", 1)))
    return L

def setup_P2_addr():
    a, b = vQ + 2, vQ + 3
    F0, F1, H0, H1 = vP2
    L = []
    L.append(VA("v_bfe_u32 v%d, v0, 2, 3" % a, V(0), V(a)))
    L.append(VA("v_lshlrev_b32 v%d, 6, v%d" % (a, a), V(a), V(a)))
    L.append(VA("v_and_b32 v%d, 3, v0" % b, V(0), V(b)))
    L.append(VA("v_lshl_add_u32 v%d, v%d, 3, v%d" % (a, b, a), V(a) + V(b), V(a)))
    L.append(VA("v_bfe_u32 v%d, v0, 4, 1" % b, V(0), V(b)))
    L.append(VA("v_xor_b32 v%d, s%d, v%d" % (b, sG, b), S(sG) + V(b), V(b)))
    L.append(VA("v_lshl_add_u32 v%d, v%d, 5, v%d" % (a, b, a), V(a) + V(b), V(a)))
    L.append(VA("v_lshl_add_u32 v%d, s%d, 12, v%d" % (a, sG, a), S(sG) + V(a), V(a)))
    L.append(VA("v_lshrrev_b32 v%d, 5, v0" % b, V(0), V(b)))
    def chk(G): assert G.misc.get("w1_left", 1) == 0, "w1 DMAs outstanding"
    L.append(OT(chk))
    L.append(VA("v_lshl_add_u32 v%d, v%d, 10, v%d" % (F0, b, a), V(a) + V(b), V(F0)))
    L.append(VA("v_lshl_add_u32 v%d, v%d, 9, v%d" % (H0, b, a), V(a) + V(b), V(H0)))
    L.append(VA("v_xor_b32 v%d, 32, v%d" % (F1, F0), V(F0), V(F1)))
    L.append(VA("v_xor_b32 v%d, 32, v%d" % (H1, H0), V(H0), V(H1)))
    def rb(G):
        for r in vP2: G.base[r] = 0
    L.append(OT(rb))
    return L

def korder(typ):
    if typ == "A":
        o = [(0, 2)] + [(s, 0) for s in (0, 1, 2, 3)] + [(s, 1) for s in (0, 1, 2, 3)] + [(0, 3)] + \
            [(s, 2) for s in (1, 2, 3)] + [(s, 3) for s in (1, 2, 3)] + [(2, 4), (3, 4)]
    else:
        o = [(0, 3)] + [(s, 0) for s in (0, 1, 2, 3)] + [(s, 1) for s in (0, 1, 2, 3)] + [(0, 4)] + \
            [(s, 2) for s in (0, 1, 2, 3)] + [(s, 3) for s in (1, 2, 3)] + [(1, 4)]
    assert len(o) == 18
    regs = {}
    blk = 0
    for i, k in enumerate(o):
        if i == 0: regs[k] = HOWN
        else:
            regs[k] = XF + 8 * blk; blk += 1
    return o, regs

def plan(typ):
    npair = 4 if typ == "A" else 5
    stages = []
    for c in range(9):
        stages.append(dict(kind="X", c=c, units=[("x", c, 0), ("x", c, 1), ("w1", 0, c)]))
    for p in range(1, npair):
        for j in range(3):
            stages.append(dict(kind="W", p=p, j=j, units=[("w1", p, 3 * j + i) for i in range(3)]))
    if not OPT["phase1_only"]:
        for j in range(9):
            u = [("F", 2 * j), ("F", 2 * j + 1), ("H", 1, j)]
            if typ == "A": u.append(("H", 2, j))
            stages.append(dict(kind="PA", j=j, units=u))
        for j in range(3):
            stages.append(dict(kind="PB", j=j, units=[("H", 3, 3 * j + i) for i in range(3)]))
    return stages

def p2_quads(typ):
    npair = 4 if typ == "A" else 5
    last = ACC[(npair - 1) % 2]; other = ACC[npair % 2]
    early = [other + 4 * i for i in range(4)] + [vQ, vQ + 4, XF + 136, XF + 140, vONES, vCS]
    late = [last + 4 * i for i in range(4)] + [vBC, 96]
    allq = early + late
    nts = 4 if typ == "A" else 3
    d = {}
    i = 0
    for ts in range(nts):
        for a in range(2):
            for b in range(2):
                d[(ts, a, b)] = allq[i]; i += 1
    return d

def build_hgs(typ, stages):
    hgs = []
    ko, hreg = korder(typ)
    quads = p2_quads(typ)
    nts = 4 if typ == "A" else 3
    for s, st in enumerate(stages):
        if st["kind"] in ("X", "W"):
            p = 0 if st["kind"] == "X" else st["p"]
            chunks = [(st["c"], 2)] if st["kind"] == "X" else [(3 * st["j"] + i, i) for i in range(3)]
            for (c, ui) in chunks:
                for a in range(2):
                    reads = []
                    for kp in range(2):
                        for u in range(2):
                            reads.append((4 * kp + 2 * u, vA + 2 * a + kp, (s, ui), u * 256))
                    mf = []
                    for b in range(2):
                        acc = ACC[p % 2] + 8 * a + 4 * b
                        for kp in range(2):
                            mf.append((acc, 4 * kp, X(c, kp, b), c == 0 and kp == 0))
                    hg = dict(stage=s, reads=reads, mf=mf, p1=(p, c, a), last=(c == 8 and a == 1))
                    if st["kind"] == "X" and a == 0:
                        hg["xreads"] = [(X(c, kp, b), vXA[kp], (s, 0), b * 2048) for b in range(2) for kp in range(2)]
                    hgs.append(hg)
        elif st["kind"] == "PA":
            j = st["j"]
            order = [(ts, a) for ts in range(nts) for a in range(2)]
            if j == 8: order = [(ts, 1) for ts in range(nts)] + [(ts, 0) for ts in range(nts)]
            for (ts, a) in order:
                if True:
                    reads = []
                    for ki in range(2):
                        for u in range(2):
                            if ts < 2: reads.append((4 * ki + 2 * u, vP2[a], (s, ki), u * 2048 + ts * 512))
                            else: reads.append((4 * ki + 2 * u, vP2[2 + a], (s, ts), ki * 2048 + u * 1024))
                    mf = []
                    for b in range(2):
                        for ki in range(2):
                            mf.append((quads[(ts, a, b)], 4 * ki, hreg[ko[2 * j + ki]] + 4 * b, j == 0 and ki == 0))
                    hgs.append(dict(stage=s, reads=reads, mf=mf, lastA=(j == 8 and (ts, a) == order[-1]), hand=(ts if (j == 8 and a == 1) else None)))
        elif st["kind"] == "PB":
            j = st["j"]
            for i in range(3):
                jj = 3 * j + i
                for a in range(2):
                    reads = []
                    for ki in range(2):
                        for u in range(2):
                            reads.append((4 * ki + 2 * u, vP2[2 + a], (s, i), ki * 2048 + u * 1024))
                    mf = []
                    for b in range(2):
                        acc = quads[(a, 1, b)]
                        for ki in range(2):
                            mf.append((acc, 4 * ki, hreg[ko[2 * jj + ki]] + 4 * b, jj == 0 and ki == 0))
                    hgs.append(dict(stage=s, reads=reads, mf=mf, lastB=(jj == 8 and a == 1)))
    return hgs

def alloc_seq(typ, stages):
    seq = []
    for s, st in enumerate(stages):
        if st["kind"] == "PB" and st["j"] == 2:
            for i in range(4 if typ == "A" else 3): seq.append(("HAND", i))
        for ui in range(len(st["units"])): seq.append((s, ui))
    if not OPT["phase1_only"]:
        for i in range(2): seq.append(("HAND2", i))
    return seq

def unit_dma_item(typ, stages, uid):
    s, ui = uid
    ud = stages[s]["units"][ui]
    ko, _ = korder(typ)
    def f(G):
        e = G.e
        base = G.unit_pos[uid] * UNIT
        if ud[0] == "x":
            c, half = ud[1], ud[2]
            chunk_entry(G, c)
            if half == 0: so = sKX + c
            else:
                S_(e, "s_add_u32 s%d, s%d, %d" % (sT0, sKX + c, 64 * 1152), S(sKX + c), S(sT0)); so = sT0
            G.unit_tok[uid] = G.dma(base, vDX, SX, so)
        elif ud[0] == "w1":
            p, c = ud[1], ud[2]
            if p > 0 and c == 0:
                e.valu("v_add_u32 v%d, 128, v%d" % (vDW, vDW), V(vDW), V(vDW))
            G.unit_tok[uid] = G.dma(base, vDW, SW1, sKW + c)
            G.misc["w1_left"] = 0 if (p == (3 if typ == "A" else 4) and c == 8) else 1
        elif ud[0] in ("F", "H"):
            G.unit_tok[uid] = G.dma(base, vDF if ud[0] == "F" else vDH, SW2, sD0)
    pre = []
    def SA(text, rd, wr): pre.append(lambda G: S_(G.e, text, rd, wr))
    if ud[0] == "x" and ud[2] == 0:
        pre.append(lambda G: chunk_entry(G, ud[1]))
    if ud[0] == "F":
        src, lev = ko[ud[1]]
        def chk(G): assert G.misc.get("F_ready")
        SA("s_add_u32 s%d, s%d, s%d" % (sD0, sW2 + src, sCOL), S(sW2 + src) + S(sCOL), S(sD0))
        if lev: SA("s_add_u32 s%d, s%d, %d" % (sD0, sD0, lev * 64 * 1152), S(sD0), S(sD0))
    elif ud[0] == "H":
        role, j = ud[1], ud[2]
        (s0, l0), (s1, l1) = ko[2 * j], ko[2 * j + 1]
        SA("s_add_u32 s%d, s%d, %d" % (sD0, sW2 + s0, l0 * 64 * 1152), S(sW2 + s0), S(sD0))
        SA("s_add_u32 s%d, s%d, %d" % (sD1, sW2 + s1, l1 * 64 * 1152), S(sW2 + s1), S(sD1))
        def sel(G):
            S_(G.e, "s_cmp_ge_u32 s%d, 2" % sTG, S(sTG), ["scc"])
            S_(G.e, "s_cselect_b32 s%d, s%d, s%d" % (sD0, sD1, sD0), S(sD0) + S(sD1), S(sD0))
        pre.append(sel)
        SA("s_add_u32 s%d, s%d, s%d" % (sD0, sD0, sCOL + role), S(sD0) + S(sCOL + role), S(sD0))
    return (0, f, pre)

def run_dma_item(G, it):
    for p in it[2]: p(G)
    it[1](G)

def try_alloc(G, typ, stages, seq, limit_stage):
    items = []
    while G.next_alloc < len(seq):
        uid = seq[G.next_alloc]
        if isinstance(uid[0], int) and uid[0] > limit_stage: break
        if isinstance(uid[0], int) and stages[uid[0]]["kind"] == "X":
            want = (uid[0] % 6) * 3 + uid[1] + 1
            if want not in G.free: break
            G.free.remove(want); pos = want
        else:
            if not G.free: break
            pos = G.free.pop(0)
        G.unit_pos[uid] = pos
        G.next_alloc += 1
        if isinstance(uid[0], int):
            items.append(unit_dma_item(typ, stages, uid))
    return items

def issue_hg_reads(G, hgs, upto):
    while G.hg_issued < min(upto, len(hgs)):
        h = hgs[G.hg_issued]
        if h["stage"] > G.certified: break
        buf = AFR + 8 * G.nbuf
        assert buf not in G.hgbuf.values()
        G.nbuf = (G.nbuf + 1) % NHG
        pend = []
        for (dst, reg, uid, o) in h.get("xreads", []):
            pend.append(("x", dst, reg, uid, o))
        for (d, reg, uid, o) in h["reads"]:
            pend.append(("t", buf + d, reg, uid, o))
        G.hgbuf[G.hg_issued] = buf
        G.hg_issued += 1
        G.misc.setdefault("rdq", [])
        G.misc["rdq"] = G.misc["rdq"] + pend

def emit_reads(G, n):
    q = G.misc.get("rdq", [])
    while n > 0 and q:
        k, dst, reg, uid, o = q.pop(0)
        const = G.unit_pos[uid] * UNIT + o
        if k == "x":
            off = G.off(reg, const)
            G.e.ins("ds_read_b128 %s, v%d offset:%d" % (vr(dst, 4), reg, off), "dsread", V(reg), V(dst, 4))
        else:
            if not (OPT["nord"] and G.misc.get("cur_stage", 0) > 9): G.trread(dst, reg, const)
        n -= 1
    G.misc["rdq"] = q

def set_mask(e, pair, lo, hi):
    S_(e, "s_mov_b32 s%d, 0x%x" % (pair, lo), [], S(pair))
    S_(e, "s_mov_b32 s%d, 0x%x" % (pair + 1, hi), [], S(pair + 1))

def stats_pre(G):
    e = G.e
    m1, m2, md = sMK, sMK + 2, sMK + 4
    set_mask(e, m1, 0xAAAAAAAA, 0xAAAAAAAA); set_mask(e, m2, 0xCCCCCCCC, 0xCCCCCCCC); set_mask(e, md, 0x00F0000F, 0xF0000F00)
    e.valu("v_and_b32 v%d, 15, v0" % vX0, V(0), V(vX0))
    S_(e, "s_lshl_b32 s%d, s%d, 8" % (sT0, sW), S(sW), S(sT0))
    S_(e, "s_add_u32 s%d, s%d, %d" % (sT0, sT0, L_ST), S(sT0), S(sT0))
    e.valu("v_lshl_add_u32 v%d, v%d, 3, s%d" % (vX0, vX0, sT0), V(vX0) + S(sT0), V(vX0))
    for b in range(2):
        g0 = STG[b]
        e.valu("v_cndmask_b32 v%d, v%d, v%d, %s" % (g0, g0, g0 + 1, sr(m1, 2)), V(g0, 2) + S(m1, 2), V(g0))
        e.valu("v_cndmask_b32 v%d, v%d, v%d, %s" % (g0 + 2, g0 + 2, g0 + 3, sr(m1, 2)), V(g0 + 2, 2) + S(m1, 2), V(g0 + 2))
        e.valu("v_cndmask_b32 v%d, v%d, v%d, %s" % (STS[b] + 1, g0, g0 + 2, sr(m2, 2)), V(g0) + V(g0 + 2) + S(m2, 2), V(STS[b] + 1))
    S_(e, "s_mov_b64 exec, %s" % sr(md, 2), S(md, 2), ["exec"])
    for b in range(2):
        G.misc["cs_tok"] = e.ins("ds_write_b64 v%d, %s offset:%d" % (vX0, vr(STS[b], 2), b * 128), "dswrite", V(vX0) + V(STS[b], 2), [])
    S_(e, "s_mov_b64 exec, -1", [], ["exec"])

def stats_items():
    L = []
    g0m, g1m = sMK, sMK + 2
    L.append(VA("v_and_b32 v%d, 15, v0" % vX0, V(0), V(vX0)))
    def f(G):
        S_(G.e, "s_lshl_b32 s%d, s%d, 8" % (sT1, sTG), S(sTG), S(sT1))
        S_(G.e, "s_add_u32 s%d, s%d, %d" % (sT1, sT1, L_ST), S(sT1), S(sT1))
        G.e.valu("v_lshl_add_u32 v%d, v%d, 3, s%d" % (vX0, vX0, sT1), V(vX0) + S(sT1), V(vX0))
    L.append((4, f))
    for b in range(2):
        L.append(OT(lambda G, b=b: G.e.ins("ds_read2_b64 %s, v%d offset0:%d offset1:%d" % (vr(STG[b], 4), vX0, b * 16, 128 + b * 16), "dsread", V(vX0), V(STG[b], 4))))
    L.append(OT(lambda G: (set_mask(G.e, g0m, 0x0000FFFF, 0), set_mask(G.e, g1m, 0xFFFF0000, 0))))
    L.append(("delay", 3))
    for b in range(2):
        t = STG[b]; u = STS[b]
        k0, k1, s = vK + 3 * b, vK + 3 * b + 1, vK + 3 * b + 2
        bc = vBC + 2 * b
        L.append(VA("v_add_f32 v%d, v%d, v%d" % (t, t, t + 2), V(t) + V(t + 2), V(t)))
        L.append(VA("v_add_f32 v%d, v%d, v%d" % (t + 1, t + 1, t + 3), V(t + 1) + V(t + 3), V(t + 1)))
        L.append(VA("v_mul_f32 v%d, 0x%x, v%d" % (t, f2u(-1.0 / 576), t), V(t), V(t)))
        L.append(VA("v_mul_f32 v%d, 0x%x, v%d" % (t + 1, f2u(1.0 / 576), t + 1), V(t + 1), V(t + 1)))
        L.append(VA("v_fma_f32 v%d, -v%d, v%d, v%d" % (t + 1, t, t, t + 1), V(t, 2), V(t + 1)))
        L.append(VA("v_max_f32 v%d, 0, v%d" % (t + 1, t + 1), V(t + 1), V(t + 1)))
        L.append(VA("v_add_f32 v%d, 0x%x, v%d" % (t + 1, f2u(1e-5), t + 1), V(t + 1), V(t + 1)))
        L.append(TR("v_sqrt_f32 v%d, v%d" % (s, t + 1), V(t + 1), V(s)))
        L.append(TR("v_rsq_f32 v%d, v%d" % (t + 2, t + 1), V(t + 1), V(t + 2)))
        L.append(VA("v_cvt_pk_bf16_f32 v%d, v%d, v%d" % (u, t, t), V(t), V(u)))
        L.append(VA("v_mul_f32 v%d, 0x%x, v%d" % (k0, f2u(C0), t + 2), V(t + 2), V(k0)))
        L.append(VA("v_mul_f32 v%d, v%d, v%d" % (t + 3, t + 2, t + 2), V(t + 2), V(t + 3)))
        L.append(VA("v_lshlrev_b32 v%d, 16, v%d" % (u + 1, u), V(u), V(u + 1)))
        L.append(VA("v_mul_f32 v%d, v%d, v%d" % (t + 3, t + 3, t + 2), V(t + 3) + V(t + 2), V(t + 3)))
        L.append(VA("v_sub_f32 v%d, v%d, v%d" % (u + 1, t, u + 1), V(t) + V(u + 1), V(u + 1)))
        L.append(VA("v_mul_f32 v%d, 0x%x, v%d" % (k1, f2u(C1), t + 3), V(t + 3), V(k1)))
        L.append(VA("v_cvt_pk_bf16_f32 v%d, v%d, v%d" % (u + 2, u + 1, s), V(u + 1) + V(s), V(u + 2)))
        L.append(VA("v_and_b32 v%d, 0xffff0000, v%d" % (u + 3, u + 2), V(u + 2), V(u + 3)))
        L.append(VA("v_sub_f32 v%d, v%d, v%d" % (u + 3, s, u + 3), V(s) + V(u + 3), V(u + 3)))
        L.append(VA("v_cvt_pk_bf16_f32 v%d, 0, v%d" % (u + 3, u + 3), V(u + 3), V(u + 3)))
        L.append(VA("v_cndmask_b32 v%d, 0, v%d, %s" % (bc, u, sr(g0m, 2)), V(u) + S(g0m, 2), V(bc)))
        L.append(VA("v_cndmask_b32 v%d, 0, v%d, %s" % (bc + 1, u + 3, sr(g1m, 2)), V(u + 3) + S(g1m, 2), V(bc + 1)))
        L.append(VA("v_cndmask_b32 v%d, v%d, v%d, %s" % (bc + 1, bc + 1, u + 2, sr(g0m, 2)), V(bc + 1) + V(u + 2) + S(g0m, 2), V(bc + 1)))
    return L

def cs_write(G, tile):
    e = G.e
    e.valu("v_and_b32 v%d, 15, v0" % vX1, V(0), V(vX1))
    e.valu("v_lshl_add_u32 v%d, v%d, 4, s%d" % (vX1, vX1, sCSW), V(vX1) + S(sCSW), V(vX1))
    G.misc["cs_tok"] = e.ins("ds_write_b32 v%d, v%d offset:%d" % (vX1, vCS, (tile & 1) * 512), "dswrite", V(vX1) + V(vCS), [])

def epilogue_items(tile, hdst, dacc=None):
    acc = ACC[tile % 2]
    if dacc is None: dacc = acc
    T = vT
    A0, A2 = vAC
    L = []
    L.append(VA("v_and_b32 v%d, 15, v0" % A2, V(0), V(A2)))
    L.append(VA("v_lshl_add_u32 v%d, v%d, 4, s%d" % (A0, A2, sCSR), V(A2) + S(sCSR), V(A0)))
    L.append(OT(lambda G: G.e.ins("ds_read_b64 %s, v%d offset:%d" % (vr(T, 2), A0, (tile & 1) * 512), "dsread", V(A0), V(T, 2))))
    L.append(VA("v_xor_b32 v%d, 8, v%d" % (A0, A0), V(A0), V(A0)))
    L.append(OT(lambda G: G.e.ins("ds_read_b64 %s, v%d offset:%d" % (vr(T + 2, 2), A0, (tile & 1) * 512), "dsread", V(A0), V(T + 2, 2))))
    L.append(VA("v_lshl_add_u32 v%d, v%d, 1, s%d" % (A2, A2, sB1A), V(A2) + S(sB1A), V(A2)))
    L.append(OT(lambda G: G.e.ins("ds_read_u16 v%d, v%d offset:%d" % (A0, A2, tile * 128), "dsread", V(A2), V(A0))))
    L.append(VA("v_xor_b32 v%d, 32, v%d" % (A2, A2), V(A2), V(A2)))
    L.append(OT(lambda G: G.e.ins("ds_read_u16 v%d, v%d offset:%d" % (A2, A2, tile * 128), "dsread", V(A2), V(A2))))
    L.append(("delay", 4))
    L.append(VA("v_add_f32 v%d, v%d, v%d" % (T, T, T + 1), V(T, 2), V(T)))
    L.append(VA("v_add_f32 v%d, v%d, v%d" % (T + 2, T + 2, T + 3), V(T + 2, 2), V(T + 2)))
    for a in range(2):
        L.append(VA("v_lshlrev_b32 v%d, 16, v%d" % (vAC[a], vAC[a]), V(vAC[a]), V(vAC[a])))
    for a in range(2):
        L.append(VA("v_cvt_pk_bf16_f32 v%d, v%d, v%d" % (vAC[a] + 1, T + 2 * a, vAC[a]), V(T + 2 * a) + V(vAC[a]), V(vAC[a] + 1)))
    for a in range(2):
        L.append(VA("v_lshlrev_b32 v%d, 16, v%d" % (T + 2 * a + 1, vAC[a] + 1), V(vAC[a] + 1), V(T + 2 * a + 1)))
    for a in range(2):
        L.append(VA("v_sub_f32 v%d, v%d, v%d" % (T + 2 * a, T + 2 * a, T + 2 * a + 1), V(T + 2 * a, 2), V(T + 2 * a)))
    for a in range(2):
        L.append(VA("v_cvt_pk_bf16_f32 v%d, v%d, v%d" % (vAC[a], T + 2 * a + 1, T + 2 * a), V(T + 2 * a, 2), V(vAC[a])))
    L.append(("delay", 1))
    for a in range(2):
        for b in range(2):
            L.append((4, lambda G, a=a, b=b: G.e.mfma(dacc + 8 * a + 4 * b, vAC[a], vBC + 2 * b, acc + 8 * a + 4 * b, k=16)))
    L.append(OT(lambda G: G.misc.__setitem__("corr_done", tile)))
    L.append(("delay", 2))
    for b in range(2):
        k0, k1, s = vK + 3 * b, vK + 3 * b + 1, vK + 3 * b + 2
        for a in range(2):
            q = [dacc + 8 * a + 4 * b + i for i in range(4)]
            if not OPT["nogelu"]:
                for i in range(4): L.append(VA("v_mul_f32 v%d, v%d, v%d" % (T + i, q[i], q[i]), V(q[i]), V(T + i)))
                for i in range(4): L.append(VA("v_fma_f32 v%d, v%d, v%d, v%d" % (T + i, T + i, k1, k0), V(T + i) + V(k1) + V(k0), V(T + i)))
                for i in range(4): L.append(VA("v_mul_f32 v%d, v%d, v%d" % (T + i, q[i], T + i), V(q[i]) + V(T + i), V(T + i)))
                for i in range(4): L.append(TR("v_exp_f32 v%d, v%d" % (T + i, T + i), V(T + i), V(T + i)))
                for i in range(4): L.append(VA("v_fma_f32 v%d, v%d, v%d, v%d" % (T + i, T + i, s, s), V(T + i) + V(s), V(T + i)))
                for i in range(4): L.append(TR("v_rcp_f32 v%d, v%d" % (T + i, T + i), V(T + i), V(T + i)))
                for i in range(4): L.append(VA("v_mul_f32 v%d, v%d, v%d" % (q[i], q[i], T + i), V(q[i]) + V(T + i), V(q[i])))
            for i in range(2):
                d = hdst + 4 * b + 2 * a + i
                L.append(VA("v_cvt_pk_bf16_f32 v%d, v%d, v%d" % (d, q[2 * i], q[2 * i + 1]), V(q[2 * i]) + V(q[2 * i + 1]), V(d)))
        def sw(G, b=b):
            e = G.e
            lab = G.newlabel("sw")
            e.raw("s_cbranch_vccz %s" % lab); e.pos += 1
            p0 = e.pos
            for i in range(2):
                r0, r1 = hdst + 4 * b + i, hdst + 4 * b + 2 + i
                e.valu("v_swap_b32 v%d, v%d" % (r0, r1), V(r0) + V(r1), V(r0) + V(r1))
            e.pos = p0
            for r in V(hdst + 4 * b, 4): e.lastw[r] = ("valu", p0 - 1, None)
            e.label(lab)
        L.append((4, sw))
        def st(G, b=b):
            e = G.e
            S_(e, "s_add_u32 s%d, s%d, %d" % (sT1, sHB, tile * 16384 + b * 1024), S(sHB), S(sT1))
            if OPT["nost"] == 1: tok = 0
            else:
              tok = e.ins("buffer_store_dwordx4 %s, v%d, %s, s%d offen%s" % (vr(hdst + 4 * b, 4), vL16, sr(SWS, 4), sT1, "" if OPT["nost"] == 2 else " sc1"), "vstore",
                        V(hdst + 4 * b, 4) + V(vL16) + S(SWS, 4) + S(sT1), [], widestore=V(hdst + 4 * b, 4))
            if OPT["nost"] == 3: tok = 0
            if b == 1:
                G.pub_pending.append([tile, tok, G.misc["cur_stage"]])
                G.misc["h_done"] = tile
        if OPT["stm"]:
            if b == 0: st0 = st
            else:
                def both(G, st0=st0, st=st):
                    st0(G); st(G)
                    G.misc["quiet"] = G.misc.get("mcount", 0) + OPT["stq"]; G.misc["quiet_k"] = OPT["stk"]
                L.append(OT(both))
        else: L.append(OT(st))
    return L

def poll(G, srdreg, saddr, tmp, need, kind):
    pr = sMK + 6; pr2 = sMK + 4
    def load_txt():
        if kind == "flag":
            return ["v_and_b32 v%d, 3, v0" % tmp, "v_lshlrev_b32 v%d, 3, v%d" % (tmp, tmp),
                    "buffer_load_dwordx2 %s, v%d, %s, s%d offen sc1" % (vr(tmp, 2), tmp, sr(srdreg, 4), saddr)]
        return ["buffer_load_dwordx2 %s, off, %s, 0 sc1" % (vr(tmp, 2), sr(srdreg, 4))]
    def cond_txt():
        if kind == "flag":
            return ["s_add_u32 s%d, s%d, %d" % (sT0, sE, need),
                    "v_subrev_u32 v%d, s%d, v%d" % (tmp, sT0, tmp),
                    "v_cmp_ne_u32 %s, s%d, v%d" % (sr(pr2, 2), sE + 1, tmp + 1),
                    "v_cmp_lt_u32 %s, %d, v%d" % (sr(pr, 2), 15 - need, tmp),
                    "s_lshl_b32 s%d, 1, s%d" % (sT0, sNQ if saddr == sF1R else sKQ),
                    "s_andn2_b32 s%d, 15, s%d" % (sT0, sT0),
                    "s_nop 0",
                    "s_or_b32 s%d, s%d, s%d" % (pr, pr, pr2),
                    "s_and_b32 s%d, s%d, s%d" % (pr, pr, sT0)]
        return ["v_readfirstlane_b32 s%d, v%d" % (sE, tmp), "v_readfirstlane_b32 s%d, v%d" % (sE + 1, tmp + 1),
                "s_nop 2", "s_cmp_eq_u32 s%d, 0" % (sE + 1)]
    st = {}
    def issue(G):
        if kind == "dbg":
            for l in load_txt(): G.e.raw(l); G.e.pos += 1
        else: dw_block(G, load_txt(), V(tmp, 2))
        G.misc["pt%d" % tmp] = G.e.vmseq
    def check(G):
        e = G.e
        if OPT["nopoll"] and kind == "flag": return
        lok = G.newlabel("ok"); lsp = G.newlabel("sp")
        vt = G.misc["pt%d" % tmp]
        n = sum(1 for (q, r) in e.vm if q > vt)
        L = ["s_waitcnt vmcnt(%d)" % n] + cond_txt() + ["s_cbranch_scc0 %s" % lok, "s_mov_b32 s%d, %d" % (sSPIN, OPT["spin"]), lsp + ":", "s_sleep 1"]
        L += load_txt() + ["s_waitcnt vmcnt(0)"] + cond_txt() + ["s_cbranch_scc0 %s" % lok,
              "s_sub_u32 s%d, s%d, 1" % (sSPIN, sSPIN), "s_cmp_lg_u32 s%d, 0" % sSPIN, "s_cbranch_scc1 %s" % lsp, lok + ":", "s_nop 1"]
        if kind == "dbg":
            for l in L:
                if l.endswith(":"): e.label(l[:-1])
                else: e.raw(l)
        else: dw_block(G, L, V(tmp, 2))
    return issue, check

def hload_items(typ, level):
    ko, hreg = korder(typ)
    keep = [(0, 2), (0, 3)] if typ == "A" else [(0, 3), (0, 4)]
    L = []
    for k in ko:
        if k[1] == level and k not in keep:
            for b in range(2):
              def f(G, k=k, b=b):
                e = G.e
                r = hreg[k]
                assert G.misc.get("xdead", -1) >= (r + 7 - XF) // 16, ("x regs still live", k, r, G.misc.get("xdead"))
                if k in (ko[16], ko[17]):
                    assert G.misc.get("h_done", -1) == (3 if typ == "A" else 4), "last epilogue not finished"
                if OPT["hdbg"] == 1: S_(e, "s_add_u32 s%d, s%d, %d" % (sT1, sHL, 0), S(sHL + k[0]), S(sT1))
                else: S_(e, "s_add_u32 s%d, s%d, %d" % (sT1, sHL + k[0], k[1] * 16384), S(sHL + k[0]), S(sT1))
                if OPT["hdbg"] != 2:
                  e.ins("buffer_load_dwordx4 %s, v%d, %s, s%d offen offset:%d%s" % (vr(r + 4 * b, 4), vL16, sr(SWS, 4), sT1, b * 1024, "" if OPT["hdbg"] == 3 else " sc1"), "vload",
                      V(vL16) + S(SWS, 4) + S(sT1), V(r + 4 * b, 4))
                G.misc["hl"] = G.misc.get("hl", frozenset()) | {r + 4 * b}
              L.append(OT(f))
    return L

def publish_pre(G, typ, s):
    npair = 4 if typ == "A" else 5
    while G.pub_pending and (s - G.pub_pending[0][2] >= OPT["pubd"] or (G.pub_pending[0][0] == npair - 1 and s - G.pub_pending[0][2] >= 1)):
        tile, tok, _ = G.pub_pending.pop(0)
        G.e.wait_vm_token(tok)
        G.misc["pub_ready"] = tile

def publish(G, typ, s, tmp):
    npair = 4 if typ == "A" else 5
    tile = G.misc.get("pub_ready", -1)
    if tile > G.published:
        flag_store(G, SWS, sF1R, sNQ, 15 if tile == npair - 1 else tile + 1, tmp)
        if OPT["th"]:
            G.e.valu("v_lshlrev_b32 v%d, 7, v0" % tmp, V(0), V(tmp))
            S_(G.e, "s_add_u32 s%d, s%d, %d" % (sT0, sHB, tile * 16384), S(sHB), S(sT0))
            touch(G, tmp, SWS, sT0, 0xffff, 0)
        G.published = tile

def vrun(G, budget):
    while G.q and budget > 0:
        it = G.q.pop(0)
        if it[0] == "delay": continue
        it[1](G)
        budget -= max(it[0], 1)

def qcost(G):
    return sum(it[0] for it in G.q if it[0] != "delay")

def run_stages(G, typ, stages, seq, hgs, s_from, s_to):
    e = G.e
    npair = 4 if typ == "A" else 5
    nP1 = 9 + 3 * (npair - 1)
    ko, hreg = korder(typ)
    late = [ACC[(npair - 1) % 2] + 4 * i for i in range(4)] + [vBC, 96]
    keepregs = [hreg[(0, l)] + 4 * b for l in (npair - 2, npair - 1) for b in range(2)]
    for s in range(s_from, s_to):
        st = stages[s]
        G.misc["cur_stage"] = s
        e.comment("==== stage %d %s" % (s, {k: v for k, v in st.items() if k != "units"}))
        if OPT["ststamp"] and s >= OPT["ststamp"]: G.stamp(True)
        isx = st["kind"] == "X"
        hard = isx or s in (9, nP1, nP1 + 9) or not OPT["split"]
        p1 = st["kind"] in ("X", "W")
        stmp = vSY1 if p1 else vA + 2
        def is_soft(k):
            if k >= len(stages): return False
            if stages[k]["kind"] == "X": return bool((OPT["soft"] >> k) & 1)
            if OPT["softw"] and not (k in G.top_hooks) and k not in (9, nP1, nP1 + 9):
                if stages[k]["kind"] == "W": return stages[k]["j"] == 2 and OPT["softw"] & 1
                if stages[k]["kind"] == "PB": return OPT["softw"] & 2
            return False
        soft = G.misc.get("soft_next") == s
        ahead = 1
        nx = s + 1
        if not soft and is_soft(s + 1):
            ahead = 2; G.misc["soft_next"] = s + 1
        if OPT["tr0"] <= s < OPT["tr1"]: G.trace(stmp)
        vb = OPT["vb"] and s >= OPT["vb0"]
        vbn = OPT["vb"] and s + 1 >= OPT["vb0"]
        hq_snapshot = len(G.misc.get("hq", []))
        for h in G.top_hooks.pop(s, []): h(G)
        if vb:
            toks = []
            if s + 1 < len(stages):
                for ui in range(len(stages[s + 1]["units"])):
                    assert (s + 1, ui) in G.unit_tok, ("dma late", s, ui)
                    toks.append(G.unit_tok[(s + 1, ui)])
            npr = 4 if typ == "A" else 5
            while G.pub_pending and (s - G.pub_pending[0][2] >= OPT["pubd"] or (G.pub_pending[0][0] == npr - 1 and s - G.pub_pending[0][2] >= 1)):
                tile, tok, _ = G.pub_pending.pop(0)
                toks.append(tok); G.misc["pub_ready"] = tile
            if st["kind"] == "PA":
                need = set(m[2] for i, h in enumerate(hgs) if h["stage"] == s for m in h["mf"]) - set(keepregs)
                for r in need:
                    assert r in G.misc.get("hl", ()), ("h load late", typ, s, r)
                    for (q, regs) in e.vm:
                        if "v%d" % r in regs: toks.append(q)
            T = max(toks) if toks else 0
            n1 = sum(1 for (q, r) in e.vm if q > T)
            has_wait = any(q <= T for (q, r) in e.vm)
            e.vm = [(q, r) for (q, r) in e.vm if q > T]
            l1 = G.newlabel("v1"); l2 = G.newlabel("v2")
            e.raw("s_cmp_eq_u32 s%d, 0" % sG); e.raw("s_cbranch_scc0 %s" % l1); e.pos += 2
            save = e.out; e.out = []
            v0 = e.vmseq
            dq = list(G.misc.get("dmaq", [])); hq = list(G.misc.get("hq", []))
            nd = 0; nh = 0
            def must(it): return False
            while (dq and nd < OPT["vbd"]) or (hq and nh < min(OPT["vbh"], hq_snapshot)):
                if dq and nd < OPT["vbd"]:
                    run_dma_item(G, dq.pop(0)); nd += 1
                if hq and nh < min(OPT["vbh"], hq_snapshot):
                    hq.pop(0)[1](G); nh += 1
            if s + 2 < len(stages):
                while any((s + 2, ui) not in G.unit_tok for ui in range(len(stages[s + 2]["units"]))):
                    assert dq, ("dma not allocated in time", typ, s)
                    run_dma_item(G, dq.pop(0))
            if s + 1 < len(stages) and stages[s + 1]["kind"] == "PA":
                need = set(m[2] for i, h in enumerate(hgs) if h["stage"] == s + 1 for m in h["mf"]) - set(keepregs)
                while any(r not in G.misc.get("hl", ()) for r in need):
                    assert hq and nh < hq_snapshot, ("h load cannot be issued in time", typ, s)
                    hq.pop(0)[1](G); nh += 1
            G.misc["dmaq"] = dq; G.misc["hq"] = hq
            blk = e.out; e.out = save
            assert not any("s_waitcnt" in l for l in blk), blk
            nb = e.vmseq - v0
            e.out += blk
            if has_wait: e.raw("s_waitcnt vmcnt(%d)" % (n1 + nb))
            e.raw("s_barrier"); e.raw("s_branch %s" % l2)
            e.label(l1)
            if has_wait: e.raw("s_waitcnt vmcnt(%d)" % n1)
            e.raw("s_barrier")
            e.out += blk
            e.label(l2)
        for sa in range(s + 1, min(s + ahead, len(stages) - 1) + 1):
            if vb or soft: break
            for ui in range(len(stages[sa]["units"])):
                while (sa, ui) not in G.unit_tok:
                    assert G.misc["dmaq"], ("dma not allocated in time", s, sa, ui)
                    run_dma_item(G, G.misc["dmaq"].pop(0))
            e.wait_vm_token(max(G.unit_tok[(sa, ui)] for ui in range(len(stages[sa]["units"]))))
        G.misc["cert_at"] = dict(G.misc.get("cert_at", {})); G.misc["cert_at"][s] = s + ahead
        if soft:
            assert s not in G.top_hooks
            G.q = G.post_items.pop(("pre", s), []) + G.q + G.post_items.pop(s, [])
        def after_sync(G, k):
            while G.misc.get("synced", -1) < k:
                kk = G.misc.get("synced", -1) + 1
                G.misc["synced"] = kk
                G.certified = G.misc["cert_at"][kk]
                if kk > 0:
                    for ui in range(len(stages[kk - 1]["units"])): G.free.append(G.unit_pos[(kk - 1, ui)])
                G.q = G.post_items.pop(("pre", kk), []) + G.q + G.post_items.pop(kk, [])
            if not OPT["phase1_only"]:
                publish(G, typ, s, stmp - 1)
            lim = s + (OPT["xla"] if isx else OPT["wla"])
            if lim >= nP1: lim = max(min(lim, s + OPT["pla"]), nP1 - 1)
            dm = try_alloc(G, typ, stages, seq, lim)
            if isx and not OPT["xsp"]: G.q = dm + G.q
            else: G.misc["dmaq"] = G.misc.get("dmaq", []) + dm
        pend_check = False
        if not OPT["phase1_only"] and not vb and not soft: publish_pre(G, typ, s)
        if soft:
            if OPT["tr0"] <= s < OPT["tr1"]: G.trace(stmp)
        elif hard:
            if not vb: e.barrier()
            if OPT["tr0"] <= s < OPT["tr1"]: G.trace(stmp)
            after_sync(G, s)
        else:
            arrive(G, s, stmp)
            if G.misc.get("synced", -1) < s - 1:
                if OPT["kchk"] <= 1: sync_issue(G, stmp)
                pend_check = True
            else:
                after_sync(G, s - 1)
        idx = [i for i, h in enumerate(hgs) if h["stage"] == s]
        def gap():
            G.misc["mcount"] = G.misc.get("mcount", 0) + 1
            G.fill()
            dq = G.misc.get("dmaq")
            if vbn:
                emit_reads(G, OPT["rdfast"] if not isx else 2)
                return
            quiet = G.misc["mcount"] < G.misc.get("quiet", 0) and G.misc.get("quiet_k", 0) <= 0
            if dq:
                it = dq[0]
                if it[2] and OPT["micro"]:
                    it[2][0](G)
                    G.misc["dmaq"] = [(it[0], it[1], it[2][1:])] + list(dq[1:])
                elif G.misc.get("gapn", 0) + 1 >= (OPT["xgap"] if isx else (OPT["dmagap"] if p1 else OPT["pgap"])) and (G.misc.get("rdq") or isx) and not quiet:
                    G.misc["quiet_k"] = G.misc.get("quiet_k", 0) - 1
                    G.misc["dma_filler"] = lambda: emit_reads(G, 1)
                    G.misc["dmaq"] = list(dq[1:])
                    run_dma_item(G, it)
                    if isx: emit_reads(G, 1)
                    G.misc["gapn"] = 0
                    G.misc["hgapn"] = G.misc.get("hgapn", 0) + 1
                    return
            emit_reads(G, OPT["rdfast"] if not isx else 2)
            G.misc["hgapn"] = G.misc.get("hgapn", 0) + 1
            if G.misc.get("hq") and G.misc["hgapn"] >= OPT["hgap"] and not quiet:
                G.misc["quiet_k"] = G.misc.get("quiet_k", 0) - 1
                G.misc["hq"] = list(G.misc["hq"])
                G.misc["hq"].pop(0)[1](G)
                G.misc["hgapn"] = 0
                return
            G.misc["gapn"] = G.misc.get("gapn", 0) + 1

        for hn, hi in enumerate(idx):
            h = hgs[hi]
            if vbn and OPT["vbprio"]:
                if G.misc.get("prio") != "vb":
                    lp = G.newlabel("pr")
                    e.raw("s_setprio 0"); e.raw("s_cmp_eq_u32 s%d, 0" % sG); e.raw("s_cbranch_scc0 %s" % lp); e.raw("s_setprio 1"); e.label(lp); e.pos += 3
                    G.misc["prio"] = "vb"
            elif OPT["ladder"] and (not isx or OPT["xlad"]):
                pr = 3 - (hn * 4) // len(idx)
                if pr != G.misc.get("prio"):
                    e.raw("s_setprio %d" % pr); e.pos += 1
                    G.misc["prio"] = pr
            if pend_check and hn == OPT["kchk"] - 1 and hn > 0: sync_issue(G, stmp)
            if pend_check and hn == OPT["kchk"]:
                sg = ("sg", s) in G.post_items
                sync_check(G, s - 1, stmp, sg)
                after_sync(G, s - 1)
                if sg: G.q = G.q + G.post_items.pop(("sg", s))
                for hk in G.top_hooks.pop(("v", s), []): hk(G)
            issue_hg_reads(G, hgs, hi + 1)
            buf = G.hgbuf[hi]
            while any((k == "t" and buf <= d < buf + 8) or (k == "x" and any(d == m[2] for m in h["mf"])) for (k, d, r, u, o) in G.misc.get("rdq", [])):
                emit_reads(G, 1)
            for n, (acc, ao, breg, first) in enumerate(h["mf"]):
                if first and st["kind"] == "W":
                    while st["p"] >= 2 and G.misc.get("h_done", -1) < st["p"] - 2:
                        G.credit = 100; G.fill()
                if st["kind"] == "PA" and st["j"] == 0 and first:
                    while G.misc.get("h_done", -1) < npair - 2:
                        G.credit = 100; G.fill()
                    if acc in late:
                        while G.misc.get("corr_done", -1) < npair - 1:
                            G.credit = 100; G.fill()
                if st["kind"] == "PA" and breg in (hreg[(0, npair - 1)], hreg[(0, npair - 1)] + 4):
                    while G.misc.get("h_done", -1) < npair - 1:
                        G.credit = 100; G.fill()
                if st["kind"] == "PA" and breg not in keepregs:
                    while breg not in G.misc.get("hl", ()):
                        assert G.misc.get("hq"), ("h load not scheduled before use", s, breg)
                        G.misc["hq"] = list(G.misc["hq"]); G.misc["hq"].pop(0)[1](G)
                if n == 0: e._autowait(V(buf, 8))
                e.mfma(acc, buf + ao, breg, None if first else acc)
                if n == 0:
                    G.hgbuf.pop(hi - 1, None)
                    issue_hg_reads(G, hgs, hi + 3)
                gap()
            if "p1" in h:
                p, c, a = h["p1"]
                if not OPT["nocs"] and a == 0:
                    e.mfma(vCS, vONES, buf, None if c == 0 else vCS)
                    gap()
                if isx:
                    for b in range(2):
                        if a == 0: e.mfma(STG[b], X(c, 0, b), X(c, 0, b), None if c == 0 else STG[b])
                        else: e.mfma(STS[b], vONES, X(c, 1, b), None if c == 0 else STS[b])
                        gap()
                if p == npair - 1 and a == 1: G.misc["xdead"] = c
                if h["last"]:
                    if p == 0:
                        G.drain()
                        stats_pre(G)
                    cs_write(G, p)
                    G.misc["deadline"] = (G.misc["mcount"] + (81 if not OPT["nocs"] else 72)) if p < npair - 1 else None
                    def th(G): G.e.wait_ds_token(G.misc["cs_tok"])
                    if s + 1 in (9, nP1) or not OPT["split"]:
                        G.top_hooks.setdefault(s + 1, []).append(th)
                    items = []
                    if p == 0: items += stats_items()
                    if p == npair - 1 and not OPT["phase1_only"]:
                        items += epilogue_items(p, hreg[(0, p)], dacc=hreg[ko[16]])
                        assert hreg[ko[17]] == hreg[ko[16]] + 8
                    else:
                        items += epilogue_items(p, HOWN)
                    if s + 1 in (9, nP1) or not OPT["split"]: G.post_items.setdefault(s + 1, []).extend(items)
                    else: G.post_items.setdefault(("sg", s + 1), []).extend(items)
            if h.get("hand") is not None:
                if h["hand"] == 0: hand_setup(G)
                G.q = G.q + [("delay", 3)] + hand_write_items(typ, h["hand"])
            if h.get("lastA"): end_passA(G, typ, stages, s)

vL4 = 23

def hand_setup(G):
    e = G.e
    aw, ar = vA, vA + 3
    e.valu("v_add_u32 v%d, s%d, v%d" % (aw, sWB, vL16), S(sWB) + V(vL16), V(aw))
    e.valu("v_xor_b32 v%d, 0x1000, v%d" % (ar, aw), V(aw), V(ar))
    G.base[aw] = 0; G.base[ar] = 0

def hand_write_items(typ, ts):
    quads = p2_quads(typ)
    aw = vA
    L = []
    q0 = quads[(ts, 1, 0)]
    for b in range(2):
        q = quads[(ts, 1, b)]
        for k in range(2):
            d = q0 + 2 * b + k
            L.append(VA("v_cvt_pk_bf16_f32 v%d, v%d, v%d" % (d, q + 2 * k, q + 2 * k + 1), V(q + 2 * k, 2), V(d)))
    def f(G):
        o = G.off(aw, G.unit_pos[("HAND", ts)] * UNIT)
        G.misc["cs_tok"] = G.e.ins("ds_write_b128 v%d, %s offset:%d" % (aw, vr(q0, 4), o), "dswrite", V(aw) + V(q0, 4), [])
    L.append(OT(f))
    return L

def end_passA(G, typ, stages, s):
    e = G.e
    G.drain()
    quads = p2_quads(typ)
    nts = 4 if typ == "A" else 3
    ar = vA + 3
    def th(G): G.e.wait_ds_token(G.misc["cs_tok"])
    G.top_hooks.setdefault(s + 1, []).append(th)
    L = []
    rbuf = [vT, vK, quads[(2, 1, 0)], quads[(2, 1, 1)]]
    seq = [(ts, b) for ts in range(nts) for b in range(2)]
    def rd(ts, r):
        def f(G):
            o = G.off(ar, G.unit_pos[("HAND", ts)] * UNIT)
            G.e.ins("ds_read_b128 %s, v%d offset:%d" % (vr(r, 4), ar, o), "dsread", V(ar), V(r, 4))
        return OT(f)
    for i in range(nts): L.append(rd(i, rbuf[i]))
    L.append(VA("v_lshlrev_b32 v%d, 2, v0" % vL4, V(0), V(vL4)))
    L.append(("delay", 2))
    t0, t1 = 20, 21
    for i, (ts, b) in enumerate(seq):
        q = quads[(ts, 0, b)]; r = rbuf[ts]
        q0 = quads[(ts, 0, 0)]; q1 = quads[(ts, 0, 1)]
        for k in range(2):
            d = r + 2 * b + k
            L.append(VA("v_lshlrev_b32 v%d, 16, v%d" % (t0, d), V(d), V(t0)))
            L.append(VA("v_and_b32 v%d, 0xffff0000, v%d" % (t1, d), V(d), V(t1)))
            L.append(VA("v_add_f32 v%d, v%d, v%d" % (q + 2 * k, q + 2 * k, t0), V(q + 2 * k) + V(t0), V(q + 2 * k)))
            L.append(VA("v_add_f32 v%d, v%d, v%d" % (q + 2 * k + 1, q + 2 * k + 1, t1), V(q + 2 * k + 1) + V(t1), V(q + 2 * k + 1)))
        for k in range(2):
            d = q0 + 2 * b + k
            L.append(VA("v_cvt_pk_bf16_f32 v%d, v%d, v%d" % (d, q + 2 * k, q + 2 * k + 1), V(q + 2 * k, 2), V(d)))
        if b == 1:
            L.append(VA("v_bitop3_b32 v%d, v%d, v%d, v%d bitop3:0x96" % (q1, q0, q0 + 1, q0 + 2), V(q0, 3), V(q1)))
            L.append(VA("v_bitop3_b32 v%d, v%d, v%d, s%d bitop3:0x96" % (q1, q1, q0 + 3, sE), V(q1) + V(q0 + 3) + S(sE), V(q1)))
            def st(G, ts=ts, q0=q0, q1=q1):
                e = G.e
                if ts < 2:
                    S_(e, "s_and_b32 s%d, s%d, 2" % (sT0, sKQ), S(sKQ), S(sT0))
                    S_(e, "s_xor_b32 s%d, s%d, %d" % (sT0, sT0, 2 + ts), S(sT0), S(sT0))
                elif ts == 2: S_(e, "s_xor_b32 s%d, s%d, 1" % (sT0, sKQ), S(sKQ), S(sT0))
                else: S_(e, "s_mov_b32 s%d, 4" % sT0, [], S(sT0))
                S_(e, "s_lshl4_add_u32 s%d, s%d, s%d" % (sT0, sT0, sKQ), S(sT0) + S(sKQ), S(sT0))
                S_(e, "s_lshl_b32 s%d, s%d, 12" % (sT0, sT0), S(sT0), S(sT0))
                S_(e, "s_add_u32 s%d, s%d, s%d" % (sT0, sT0, sPS), S(sT0) + S(sPS), S(sT0))
                e.ins("buffer_store_dwordx4 %s, v%d, %s, s%d offen sc1" % (vr(q0, 4), vL16, sr(SWS, 4), sT0), "vstore",
                      V(q0, 4) + V(vL16) + S(SWS, 4) + S(sT0), [], widestore=V(q0, 4))
                e.ins("buffer_store_dword v%d, v%d, %s, s%d offen offset:1024 sc1" % (q1, vL4, sr(SWS, 4), sT0), "vstore",
                      V(q1) + V(vL4) + S(SWS, 4) + S(sT0), [])
            L.append(OT(st))
    G.post_items.setdefault(("pre", s + 1), []).extend(L)

def final(G, typ, stages):
    e = G.e
    quads = p2_quads(typ)
    G.drain()
    aw, ar = vA, vA + 3
    own = [quads[(0, 1, b)] for b in range(2)]
    give = [quads[(1, 1, b)] for b in range(2)]
    G.trace(22)
    RB = XF
    def loads(n0, cnt, sbase):
        L = []
        for n in range(cnt):
            r = RB + 8 * (n0 + n)
            L.append("buffer_load_dwordx4 %s, v%d, %s, s%d offen sc1" % (vr(r, 4), vL16, sr(SWS, 4), sbase + n))
            L.append("buffer_load_dword v%d, v%d, %s, s%d offen offset:1024 sc1" % (r + 4, vL4, sr(SWS, 4), sbase + n))
        return L
    def verify(n0, cnt):
        L = []
        for n in range(cnt):
            r = RB + 8 * (n0 + n)
            L.append("v_bitop3_b32 v%d, v%d, v%d, v%d bitop3:0x96" % (r + 5, r, r + 1, r + 2))
            L.append("v_bitop3_b32 v%d, v%d, v%d, v%d bitop3:0x96" % (r + 5, r + 5, r + 3, r + 4))
            L.append("v_xor_b32 v%d, s%d, v%d" % (r + 5, sE, r + 5))
            if n > 0: L.append("v_or_b32 v%d, v%d, v%d" % (RB + 8 * n0 + 5, RB + 8 * n0 + 5, r + 5))
        L.append("v_cmp_ne_u32 vcc, 0, v%d" % (RB + 8 * n0 + 5))
        L.append("s_nop 3")
        L.append("s_cmp_lg_u64 vcc, 0")
        return L
    so, sl = sKW, sKW + 4
    S_(e, "s_lshl_b32 s%d, s%d, 16" % (sMK, sKQ), S(sKQ), S(sMK))
    S_(e, "s_add_u32 s%d, s%d, s%d" % (sMK, sMK, sPS), S(sMK) + S(sPS), S(sMK))
    for n in range(3):
        S_(e, "s_add_u32 s%d, s%d, %d" % (sT0, sKQ, n + 1), S(sKQ), S(sT0))
        S_(e, "s_and_b32 s%d, s%d, 3" % (sT0, sT0), S(sT0), S(sT0))
        S_(e, "s_lshl_b32 s%d, s%d, 12" % (sT0, sT0), S(sT0), S(sT0))
        S_(e, "s_add_u32 s%d, s%d, s%d" % (so + n, sT0, sMK), S(sT0) + S(sMK), S(so + n))
    e.nop(max(e._need("vload", [], V(RB, 64), "x"), 0))
    for l in loads(0, 3, so): e.raw(l); e.pos += 1
    if typ == "A":
        for n in range(4):
            S_(e, "s_add_u32 s%d, s%d, %d" % (sl + n, sPS, 4 * 65536 + n * 4096), S(sPS), S(sl + n))
        lab = G.newlabel("nl")
        e.raw("s_cmp_eq_u32 s%d, s%d" % (sTG, sKQ)); e.raw("s_cbranch_scc0 %s" % lab)
        for l in loads(3, 4, sl): e.raw(l)
        e.label(lab)
    for b in range(2):
        o = G.off(aw, G.unit_pos[("HAND2", b)] * UNIT)
        tok = e.ins("ds_write_b128 v%d, %s offset:%d" % (aw, vr(give[b], 4), o), "dswrite", V(aw) + V(give[b], 4), [])
    ba, oa = vT, vT + 1
    e.valu("v_lshrrev_b32 v%d, 4, v0" % (vT + 2), V(0), V(vT + 2))
    S_(e, "s_lshl_b32 s%d, s%d, 5" % (sT0, sG), S(sG), S(sT0))
    S_(e, "s_sub_u32 s%d, s%d, s%d" % (sT1, sT0, sDBB), S(sT0) + S(sDBB), S(sT1))
    S_(e, "s_add_u32 s%d, s%d, %d" % (sT1, sT1, L_B2), S(sT1), S(sT1))
    e.valu("v_lshl_add_u32 v%d, v%d, 3, s%d" % (ba, vT + 2, sT1), V(vT + 2) + S(sT1), V(ba))
    e.valu("v_and_b32 v%d, 15, v0" % oa, V(0), V(oa))
    e.valu("v_mul_u32_u24 v%d, 1152, v%d" % (oa, oa), V(oa), V(oa))
    e.valu("v_lshl_add_u32 v%d, v%d, 3, v%d" % (oa, vT + 2, oa), V(oa) + V(vT + 2), V(oa))
    sOB = sMK + 1
    S_(e, "s_lshl2_add_u32 s%d, s%d, s%d" % (sOB, sM, sTG), S(sM) + S(sTG), S(sOB))
    S_(e, "s_mul_i32 s%d, s%d, %d" % (sOB, sOB, 32 * 1152), S(sOB), S(sOB))
    S_(e, "s_add_u32 s%d, s%d, s%d" % (sOB, sOB, sT0), S(sOB) + S(sT0), S(sOB))
    e.wait_ds_token(tok)
    e.barrier()
    R = AFR
    for b in range(2):
        o = G.off(ar, G.unit_pos[("HAND2", b)] * UNIT)
        e.ins("ds_read_b128 %s, v%d offset:%d" % (vr(R + 4 * b, 4), ar, o), "dsread", V(ar), V(R + 4 * b, 4))
    def finish_tile(acc, col_s, n0, cnt, sbase, init):
        bb = R + 8; f = R + 12
        e.valu("v_add_u32 v%d, s%d, v%d" % (bb, col_s, ba), S(col_s) + V(ba), V(bb))
        e.ins("ds_read_b64 %s, v%d" % (vr(bb, 2), bb), "dsread", V(bb), V(bb, 2))
        e.valu("v_lshlrev_b32 v%d, 16, v%d" % (f, bb), V(bb), V(f))
        e.valu("v_and_b32 v%d, 0xffff0000, v%d" % (f + 1, bb), V(bb), V(f + 1))
        e.valu("v_lshlrev_b32 v%d, 16, v%d" % (f + 2, bb + 1), V(bb + 1), V(f + 2))
        e.valu("v_and_b32 v%d, 0xffff0000, v%d" % (f + 3, bb + 1), V(bb + 1), V(f + 3))
        for b in range(2):
            q = acc[b]
            for k in range(4):
                if init:
                    e.valu("v_mov_b32 v%d, v%d" % (q + k, f + k), V(f + k), V(q + k))
                else:
                    e.valu("v_add_f32 v%d, v%d, v%d" % (q + k, q + k, R + 4 * b + k), V(q + k) + V(R + 4 * b + k), V(q + k))
                    e.valu("v_add_f32 v%d, v%d, v%d" % (q + k, q + k, f + k), V(q + k) + V(f + k), V(q + k))
        lok = G.newlabel("fo"); lsp = G.newlabel("fs")
        e.raw("s_waitcnt vmcnt(0)")
        for l in verify(n0, cnt): e.raw(l)
        e.raw("s_cbranch_scc0 %s" % lok)
        if OPT["nopoll"]: e.raw("s_branch %s" % lok)
        e.raw("s_mov_b32 s%d, %d" % (sSPIN, OPT["spin"]))
        e.label(lsp)
        e.raw("s_sleep %d" % OPT["fsleep"])
        for l in loads(n0, cnt, sbase): e.raw(l)
        e.raw("s_waitcnt vmcnt(0)")
        for l in verify(n0, cnt): e.raw(l)
        e.raw("s_cbranch_scc0 %s" % lok)
        e.raw("s_sub_u32 s%d, s%d, 1" % (sSPIN, sSPIN)); e.raw("s_cmp_lg_u32 s%d, 0" % sSPIN); e.raw("s_cbranch_scc1 %s" % lsp)
        e.label(lok)
        e.vm = []
        if not init:
            G.stamp(); G.trace(22)
        for n in range(cnt):
            r = RB + 8 * (n0 + n)
            for b in range(2):
                q = acc[b]
                for k in range(2):
                    d = r + 2 * b + k
                    e.valu("v_lshlrev_b32 v%d, 16, v%d" % (r + 6, d), V(d), V(r + 6))
                    e.valu("v_and_b32 v%d, 0xffff0000, v%d" % (r + 7, d), V(d), V(r + 7))
                    e.valu("v_add_f32 v%d, v%d, v%d" % (q + 2 * k, q + 2 * k, r + 6), V(q + 2 * k) + V(r + 6), V(q + 2 * k))
                    e.valu("v_add_f32 v%d, v%d, v%d" % (q + 2 * k + 1, q + 2 * k + 1, r + 7), V(q + 2 * k + 1) + V(r + 7), V(q + 2 * k + 1))
        S_(e, "s_add_u32 s%d, s%d, s%d" % (sT1, sOB, col_s), S(sOB) + S(col_s), S(sT1))
        for b in range(2):
            q = acc[b]
            e.valu("v_cvt_pk_bf16_f32 v%d, v%d, v%d" % (q, q, q + 1), V(q, 2), V(q))
            e.valu("v_cvt_pk_bf16_f32 v%d, v%d, v%d" % (q + 1, q + 2, q + 3), V(q + 2, 2), V(q + 1))
            if b == 1: S_(e, "s_add_u32 s%d, s%d, %d" % (sT1, sT1, 16 * 1152), S(sT1), S(sT1))
            e.ins("buffer_store_dwordx2 %s, v%d, %s, s%d offen%s" % (vr(q, 2), oa, sr(SOUT, 4), sT1, ["", " sc1", " nt", " sc0 sc1"][OPT["ost"]]), "vstore", V(q, 2) + V(oa) + S(SOUT, 4) + S(sT1), [])
    finish_tile(own, sCOL + 3, 0, 3, so, False)
    if typ == "A":
        lab = G.newlabel("nl")
        S_(e, "s_cmp_eq_u32 s%d, s%d" % (sTG, sKQ), S(sTG) + S(sKQ), ["scc"])
        e.raw("s_cbranch_scc0 %s" % lab); e.pos += 1
        finish_tile(give, sCOL + 2, 3, 4, sl, True)
        e.label(lab)

def finish(G):
    e = G.e
    G.drain()
    G.stamp()
    if OPT["trace"]:
        e.raw("s_waitcnt vmcnt(0) lgkmcnt(0)")
        G.trace(22)
        e.raw("v_mov_b32 v22, s92")
        e.raw("s_mov_b64 exec, %s" % sr(sWM, 2))
        e.raw("ds_write_b32 v%d, v22 offset:%d" % (vL16, 6144 + 15 * 128 + 12))
        e.raw("s_mov_b64 exec, -1")
        e.raw("s_waitcnt lgkmcnt(0)")
        e.raw("s_barrier")
        e.raw("s_lshl2_add_u32 s%d, s%d, s%d" % (sT0, sM, sKQ))
        e.raw("s_lshl2_add_u32 s%d, s%d, s%d" % (sT0, sT0, sNQ))
        e.raw("s_lshl_b32 s%d, s%d, 11" % (sT0, sT0))
        e.raw("s_add_u32 s%d, s%d, 0x%x" % (sT0, sT0, WS_TS))
        e.raw("ds_read_b128 v[24:27], v%d offset:6144" % vL16)
        e.raw("ds_read_b128 v[28:31], v%d offset:7168" % vL16)
        e.raw("s_waitcnt lgkmcnt(0)")
        e.raw("buffer_store_dwordx4 v[24:27], v%d, %s, s%d offen" % (vL16, sr(SWS, 4), sT0))
        e.raw("buffer_store_dwordx4 v[28:31], v%d, %s, s%d offen offset:1024" % (vL16, sr(SWS, 4), sT0))
        print("ntrace", G.tag, G.misc["ntrace"], file=sys.stderr)
    if OPT["stamps"]:
        e.raw("s_waitcnt vmcnt(0) lgkmcnt(0)")
        e.raw("s_memrealtime s[62:63]")
        e.raw("s_waitcnt lgkmcnt(0)")
        e.raw("v_mov_b32 v33, s62"); e.raw("v_mov_b32 v34, s100"); e.raw("v_mov_b32 v35, 0")
        e.raw("s_lshl2_add_u32 s%d, s%d, s%d" % (sT0, sM, sKQ))
        e.raw("s_lshl2_add_u32 s%d, s%d, s%d" % (sT0, sT0, sNQ))
        e.raw("s_lshl3_add_u32 s%d, s%d, s%d" % (sT0, sT0, sW))
        e.raw("s_lshl_b32 s%d, s%d, 6" % (sT0, sT0))
        e.raw("s_add_u32 s%d, s%d, 0x%x" % (sT0, sT0, WS_TS))
        for i in range(NSTAMP):
            e.raw("v_mov_b32 v%d, s%d" % (24 + i, sTS + i))
        e.raw("s_mov_b64 exec, 1")
        for i in range(3):
            e.raw("buffer_store_dwordx4 %s, off, %s, s%d offset:%d" % (vr(24 + 4 * i, 4), sr(SWS, 4), sT0, 16 * i))
    e.raw("s_endpgm")

def schedule_polls(G, typ, stages):
    npair = 4 if typ == "A" else 5
    nP1 = 9 + 3 * (npair - 1)
    ko, hreg = korder(typ)
    if typ == "A": chk_stage = {0: nP1 - 2, 1: nP1, 2: nP1 + 3, 3: nP1 + 5, 4: nP1 + 7}
    else: chk_stage = {0: nP1 - 2, 1: nP1 - 1, 2: nP1 + 1, 3: nP1 + 4, 4: nP1 + 7}
    if OPT["vb"]:
        if typ == "A": chk_stage = {0: nP1 - 3, 1: nP1, 2: nP1 + 3, 3: nP1 + 4, 4: nP1 + 6}
        else: chk_stage = {0: nP1 - 3, 1: nP1 - 2, 2: nP1 + 1, 3: nP1 + 4, 4: nP1 + 6}
    for k in chk_stage:
        chk_stage[k] += OPT.get("ps%s%d" % (typ, k), 0)
    for lev, cs in chk_stage.items():
        tmp = vQ + 4 * (lev & 1) if cs <= nP1 else (hreg[ko[15]] if lev < 4 else 22)
        iss, chk = poll(G, SWS, sF1R, tmp, lev + 1, "flag")
        G.post_items.setdefault(("pre", cs - 1), []).append((8, iss))
        def hook(G, lev=lev, chk=chk):
            assert G.published >= min(lev, npair - 1), ("publish order", typ, lev, G.published)
            chk(G)
        G.top_hooks.setdefault(cs, []).append(hook)
        def addq(G, lev=lev): G.misc["hq"] = G.misc.get("hq", []) + hload_items(typ, lev)
        G.top_hooks.setdefault(cs, []).append(addq)
    G.post_items.setdefault(nP1 - 3, []).extend(setup_P2_addr())

def main():
    if OPT["nomfma"]:
        Em.mfma = lambda self, *a, **k: None
    G = Gen()
    prologue(G)
    e = G.e
    st = {t: plan(t) for t in "AB"}
    seq = {t: alloc_seq(t, st[t]) for t in "AB"}
    hgs = {t: build_hgs(t, st[t]) for t in "AB"}
    for it in try_alloc(G, "A", st["A"], seq["A"], OPT["n0"] - 1): it[1](G)
    prologue_b(G)
    if not OPT["phase1_only"]: nonce_store(G)
    if OPT["cpf"]:
        t = vTMP + 2
        dw_block(G, ["s_getpc_b64 s[%d:%d]" % (sT0, sT1),
                     "s_and_b32 s%d, s%d, 7" % (sSPIN, sM),
                     "s_lshl2_add_u32 s%d, s%d, s%d" % (sSPIN, sSPIN, sNQ),
                     "s_mul_i32 s%d, s%d, %d" % (sSPIN, sSPIN, 12 * 128),
                     "v_lshlrev_b32 v%d, 7, v0" % t,
                     "v_add_u32 v%d, s%d, v%d" % (t, sSPIN, t),
                     "v_min_u32 v%d, CODE_TAIL, v%d" % (t, t)] + touch_lines(12) +
                    ["global_load_lds_dword v%d, s[%d:%d]" % (t, sT0, sT1), "s_mov_b64 exec, -1"], V(t), wave=7)
        e.label("L_cpf")
    for it in try_alloc(G, "A", st["A"], seq["A"], OPT["n1"] - 1): it[1](G)
    e.wait_vm_token(max(G.unit_tok[(0, ui)] for ui in range(3)))
    e.barrier()
    G.certified = 0
    G.stamp()
    ds = deferred_setup()
    for i, it in enumerate(ds):
        G.post_items.setdefault(1 + i // 3, []).append(it)
    nw = 1
    if OPT["tw1"]:
        for pair, st0 in ((1, 2), (2, 4), (3, 7), (4, 9)):
            for piece in range(2):
                G.post_items.setdefault(st0 + piece, []).append(touch_w1_piece(pair, piece, nw % 7 + 1)); nw += 1
    G.post_items.setdefault(7, []).append(OT(cols_setup))
    if not OPT["phase1_only"]:
        if OPT["twa"]:
            for piece in range(12):
                G.post_items.setdefault(OPT["tw2"] + piece // OPT["twp"], []).append(touch_w2_pieceA(piece, nw % 7 + 1)); nw += 1
        elif OPT["tw2"]:
            for piece in range(OPT["tw2n"]):
                G.post_items.setdefault(OPT["tw2"] + piece, []).append(touch_w2_piece(piece, OPT["tw2n"], nw % 7 + 1)); nw += 1
        if OPT["tlb"]:
            for i, it in enumerate(tlb_items()): G.post_items.setdefault(OPT["tlb"] + i, []).append(it)
        iss, chk = poll(G, SDBG, 0, ACC[1] + 14, 0, "dbg")
        G.post_items.setdefault(("pre", 6), []).append((0, iss))
        G.top_hooks.setdefault(8, []).append(chk)
        G.post_items.setdefault(9, []).extend(setup_F_voffset())
    G.top_hooks.setdefault(8, []).append(lambda G: G.e.wait_vm_token(G.misc["btok"]))
    issue_hg_reads(G, hgs["A"], 2)
    emit_reads(G, 100)
    run_stages(G, "A", st["A"], seq["A"], hgs["A"], 0, 9)
    G.stamp()
    ncommon = 11
    run_stages(G, "A", st["A"], seq["A"], hgs["A"], 9, ncommon)
    assert seq["A"][:G.next_alloc] == seq["B"][:G.next_alloc] and all(st["A"][u[0]] == st["B"][u[0]] for u in seq["A"][:G.next_alloc])
    S_(e, "s_cmp_ge_u32 s%d, 2" % sNQ, S(sNQ), ["scc"])
    e.raw("s_cbranch_scc1 L_typeB"); e.pos += 1
    txt = e.text()
    for typ in "AB":
        Gx = G.fork(typ)
        npair = 4 if typ == "A" else 5
        nP1 = 9 + 3 * (npair - 1)
        if not OPT["phase1_only"]: schedule_polls(Gx, typ, st[typ])
        run_stages(Gx, typ, st[typ], seq[typ], hgs[typ], ncommon, nP1)
        Gx.stamp()
        if OPT["phase1_only"]:
            for h in Gx.top_hooks.pop(nP1, []): h(Gx)
            Gx.e.barrier()
            Gx.q = Gx.q + Gx.post_items.pop(nP1 - 1, []) + Gx.post_items.pop(nP1, [])
        else:
            run_stages(Gx, typ, st[typ], seq[typ], hgs[typ], nP1, nP1 + 9)
            Gx.stamp()
            run_stages(Gx, typ, st[typ], seq[typ], hgs[typ], nP1 + 9, nP1 + 12)
            Gx.stamp()
            final(Gx, typ, st[typ])
        finish(Gx)
        assert not Gx.top_hooks and not Gx.post_items, (Gx.top_hooks.keys(), Gx.post_items.keys())
        print(typ, Gx.e.stats, file=sys.stderr)
        if typ == "B": txt += "L_typeB:\n"
        txt += Gx.e.text()
    txt += "L_end:\n"
    txt = txt.replace("CODE_TAIL", "L_end-L_cpf")
    out = file_text(["; @launch grid=(256,1,1) block=(512,1,1) lds=%d" % LDS_BYTES], [(KNAME, txt, 256, 102, 256)])
    open(sys.argv[1], "w").write(out)

if __name__ == "__main__":
    main()
```

```python
import sys, math, struct
from em16 import *
from asmlib import file_text

KNAME = "standalone__mixer_channel_mlp__prompt_kernel"
OPT = dict(phase1_only=0, stamps=0, rate=20, rot=1, nogelu=0, nocs=0, pf=1, spin=200000, nobar=0, nodma=0, nord=0, split=0, kchk=1, rdfast=1, ststamp=0, prio=0, vbudget=240, vpre=40, dmastep=6, fine=0, dmagap=7, adapt=1, trace=0, tr0=9, tr1=99, th=0, tw1=0, tw2=7, tw2n=6, hgap=5, early=1, hdbg=0, pubd=2, pub2=2, n0=2, n1=4, xla=5, rotm=0, fsleep=1, wla=7, pla=7, nopoll=0, nost=0, ladder=1, micro=1, cpf=1, tlb=0, tlbs=16, xsp=1, xgap=3, xlad=1, nt=0, vb=0, nomfma=0, vb0=10, vbh=4, vbd=4, vbprio=1, stq=0, stk=2, stm=0, pgap=7, soft=0, softw=0, twa=0, twp=2, ost=0, pw=2, cpe=0, fin=1, fearly=0, prot=0)
for a in sys.argv[2:]:
    k, v = a.split("=")
    OPT[k] = int(v)

UNIT = 8192
NU = 19
L_PW = 0
L_SCR = 512
L_CS = 1024
L_ST = L_CS + 1024
L_B1 = L_ST + 2048
L_B2 = L_B1 + 1024
RING0 = UNIT
LDS_BYTES = (NU + 1) * UNIT
WS_PART = 0x1200000
WS_F1 = 0x2800000
WS_F2 = WS_F1 + 0x40000
WS_TS = 0x3000000
C0 = -2.0 * math.sqrt(2.0 / math.pi) * math.log2(math.e)
C1 = C0 * 0.044715
def f2u(x): return struct.unpack("<I", struct.pack("<f", x))[0]

SX, SW1, SW2, SWS, SOUT, SDBG, SB1, SB2 = 4, 8, 12, 16, 20, 24, 28, 32
sW, sTG, sG, sM, sKQ, sNQ, sWB = 36, 37, 38, 39, 40, 41, 42
sDBB = 43
sKW = 44; sKX = 53
sMK = 54
sT0, sT1 = 62, 63
sPB, sHB, sCSW, sCSR = 64, 65, 66, 67
sW2 = 68; sHL = 72
sPS, sLB, sSPIN, sB1A = 76, 77, 78, 79
sCOL = 80
sF1R, sF2R = 2, 3
sTS = 84; NSTAMP = 9
sWM = 98
sRA, sRB, sPI, sNP, sB1E = 84, 88, 93, 94, 95
sGM = 53
sD0, sD1, sH0 = 56, 57, 53
sE = 96
sNZ = 80
vA = 1
vDW, vDX, vDH = 5, 6, 7
vDF = vDX
vBC = 8
vT = 12
vK = 16
vAC = [22, 96]
AFR = 24; NHG = 3
ACC = [48, 64]
HOWN = 80
vONES = 88
vCS = 92
vX0, vX1 = 98, 99
vL16 = 100
vP2 = [5, 101, 102, 103]
vXA = [101, 102]
vQ = 104
vSY1 = 99
XF = 112
STG = [HOWN, HOWN + 4]
STS = [vQ, vQ + 4]
vTMP = ACC[1]

def X(c, kp, b): return XF + 16 * c + 8 * b + 4 * kp

class Gen:
    def __init__(self):
        self.e = Em()
        self.base = {}
        self.q = []
        self.credit = 0
        self.hg_issued = 0
        self.hgbuf = {}
        self.nbuf = 0
        self.unit_tok = {}
        self.unit_pos = {}
        self.free = list(range(1, NU + 1))
        self.next_alloc = 0
        self.nstamp = 0
        self.top_hooks = {}
        self.post_items = {}
        self.certified = -1
        self.nl = 0
        self.pub_pending = []
        self.published = -1
        self.misc = {}
        self.tag = ""
    def fork(self, tag):
        import copy
        g = Gen()
        g.e = self.e.fork()
        for k in ("base", "hgbuf", "unit_tok", "unit_pos", "misc"):
            setattr(g, k, dict(getattr(self, k)))
        for k in ("q", "free", "pub_pending"):
            setattr(g, k, list(getattr(self, k)))
        for k in ("credit", "hg_issued", "nbuf", "next_alloc", "nstamp", "certified", "nl", "published"):
            setattr(g, k, getattr(self, k))
        g.top_hooks = {k: list(v) for k, v in self.top_hooks.items()}
        g.post_items = {k: list(v) for k, v in self.post_items.items()}
        g.tag = tag
        return g
    def newlabel(self, p):
        self.nl += 1
        return "L%s_%s%d" % (self.tag, p, self.nl)
    def stamp(self, st=False):
        if OPT["ststamp"] and not st and self.nstamp > 0: return
        if OPT["stamps"] in (1, 3) and self.nstamp < NSTAMP:
            self.e.raw("s_memtime s[94:95]" if OPT["stamps"] == 1 else "s_memrealtime s[94:95]")
            self.e.pos += 1
            self.e._wait(lgkm=0)
            self.e.raw("s_mov_b32 s%d, s94" % (sTS + self.nstamp))
            self.nstamp += 1
    def trace(self, tmp):
        if not OPT["trace"]: return
        i = self.misc.get("ntrace", 0)
        assert i < 63
        self.misc["ntrace"] = i + 1
        e = self.e
        e.raw("s_memtime s[94:95]"); e.pos += 1
        e._wait(lgkm=0)
        e.valu("v_mov_b32 v%d, s94" % tmp, [], V(tmp))
        S_(e, "s_mov_b64 exec, %s" % sr(sWM, 2), S(sWM, 2), ["exec"])
        e.ins("ds_write_b32 v%d, v%d offset:%d" % (vL16, tmp, 6144 + (i // 4) * 128 + (i % 4) * 4), "dswrite", V(vL16) + V(tmp), [])
        S_(e, "s_mov_b64 exec, -1", [], ["exec"])
    def off(self, reg, const):
        b = self.base.get(reg, 0)
        if not (0 <= const - b <= 65535 - 16):
            nb = (const // UNIT) * UNIT
            d = (nb - b) & 0xffffffff
            self.e.valu("v_add_u32 v%d, 0x%x, v%d" % (reg, d, reg), V(reg), V(reg))
            self.credit -= 4
            self.base[reg] = nb
            b = nb
        return const - b
    def trread(self, dst, reg, const):
        o = self.off(reg, const)
        return self.e.ins("ds_read_b64_tr_b16 %s, v%d offset:%d" % (vr(dst, 2), reg, o), "dsread", V(reg), V(dst, 2))
    def fill(self):
        rate = OPT["rate"]
        dl = self.misc.get("deadline")
        if OPT["adapt"] and dl is not None:
            left = dl - self.misc.get("mcount", 0)
            qc = sum(it[0] if it[0] != "delay" else 0 for it in self.q)
            nd = sum(it[1] for it in self.q if it[0] == "delay")
            rate = qc / max(left - nd - 2, 1) + 0.05
            rate = max(rate, 4.0)
        self.credit = min(self.credit + rate, max(rate + 4, 8))
        nother = 0
        while self.q:
            it = self.q[0]
            if it[0] == "delay":
                if it[1] <= 1: self.q.pop(0)
                else: self.q[0] = ("delay", it[1] - 1)
                return
            cost, fn = it[0], it[1]
            if cost == 0:
                if nother >= 2: return
                nother += 1
            elif cost > self.credit:
                return
            self.q.pop(0)
            self.credit -= cost
            fn(self)
    def drain(self):
        while self.q:
            it = self.q.pop(0)
            if it[0] != "delay": it[1](self)
    def dma(self, lds_const, voff, srdreg, soff):
        e = self.e
        if OPT["nodma"] and self.misc.get("cur_stage", 0) > 5:
            fl = self.misc.pop("dma_filler", None)
            if fl: fl()
            return 0
        e.salu("s_add_u32 m0, s%d, %d" % (sWB, lds_const), S(sWB), ["m0"])
        fl = self.misc.pop("dma_filler", None)
        if fl: fl()
        ntf = " nt" if (OPT["nt"] >> {SX: 0, SW1: 1, SW2: 2}[srdreg]) & 1 else ""
        return e.ins("buffer_load_dwordx4 v%d, %s, s%d offen%s lds" % (voff, sr(srdreg, 4), soff, ntf), "dma",
                     V(voff) + S(srdreg, 4) + S(soff) + ["m0"], [])

def VA(text, rd, wr): return (4, lambda G: G.e.valu(text, rd, wr))
def TR(text, rd, wr): return (8, lambda G: G.e.trans(text, rd, wr))
def OT(fn): return (0, fn)

def S_(e, text, rd=(), wr=()): e.salu(text, rd, wr)

sCP = 60
sROT = 81
sXB = 82

def srd(e, d, p, nbytes):
    S_(e, "s_mov_b32 s%d, s%d" % (d, p), [], S(d))
    S_(e, "s_mov_b32 s%d, s%d" % (d + 1, p + 1), [], S(d + 1))
    S_(e, "s_mov_b32 s%d, 0x%x" % (d + 2, nbytes), [], S(d + 2))
    S_(e, "s_mov_b32 s%d, 0x20000" % (d + 3), [], S(d + 3))

def chunk_entry(G, c):
    if c in G.misc.get("cent", ()): return
    G.misc["cent"] = G.misc.get("cent", frozenset()) | {c}
    e = G.e
    if c > 0:
        S_(e, "s_add_u32 s%d, s%d, 1" % (sROT, sROT), S(sROT), S(sROT))
        S_(e, "s_cmp_eq_u32 s%d, 9" % sROT, S(sROT), ["scc"])
        S_(e, "s_cselect_b32 s%d, 0, s%d" % (sROT, sROT), S(sROT), S(sROT))
    S_(e, "s_mul_i32 s%d, s%d, %d" % (sKW + c, sROT, 64 * 9216), S(sROT), S(sKW + c))
    S_(e, "s_lshl_b32 s%d, s%d, 7" % (sKX + c, sROT), S(sROT), S(sKX + c))
    S_(e, "s_add_u32 s%d, s%d, s%d" % (sKX + c, sKX + c, sXB), S(sKX + c) + S(sXB), S(sKX + c))

def prologue(G):
    e = G.e
    e.raw("s_cmp_ge_u32 s2, 256"); e.raw("s_cbranch_scc1 L_end")
    e.raw("s_load_dwordx16 s[64:79], s[0:1], 0")
    if OPT["stamps"]:
        e.raw("s_memrealtime s[100:101]")
    if OPT["trace"]: e.raw("s_memtime s[92:93]")
    e.raw("s_memrealtime s[%d:%d]" % (sE, sE + 1))
    e.valu("v_lshrrev_b32 v1, 6, v0", V(0), V(1))
    e.valu("v_and_b32 v0, 63, v0", V(0), V(0))
    e.ins("v_readfirstlane_b32 s%d, v1" % sW, "readlane", V(1), S(sW))
    S_(e, "s_and_b32 s%d, s2, 3" % sKQ, [], S(sKQ))
    S_(e, "s_lshr_b32 s%d, s2, 3" % sT0, [], S(sT0))
    S_(e, "s_and_b32 s%d, s%d, 3" % (sNQ, sT0), S(sT0), S(sNQ))
    S_(e, "s_lshr_b32 s%d, s%d, 2" % (sT0, sT0), S(sT0), S(sT0))
    S_(e, "s_lshl_b32 s%d, s2, 1" % sM, [], S(sM))
    S_(e, "s_and_b32 s%d, s%d, 8" % (sM, sM), S(sM), S(sM))
    S_(e, "s_add_u32 s%d, s%d, s%d" % (sM, sM, sT0), S(sM) + S(sT0), S(sM))
    S_(e, "s_lshl_b32 s%d, s%d, 10" % (sWB, sW), S(sW), S(sWB))
    if OPT["rot"]:
        S_(e, "s_lshl1_add_u32 s%d, s%d, s%d" % (sROT, sNQ, sT0), S(sNQ) + S(sT0), S(sROT))
        if OPT["rotm"]:
            S_(e, "s_lshr_b32 s%d, s%d, 1" % (sT1, sNQ), S(sNQ), S(sT1))
            S_(e, "s_add_u32 s%d, s%d, s%d" % (sROT, sROT, sT1), S(sROT) + S(sT1), S(sROT))
        S_(e, "s_sub_u32 s%d, s%d, 9" % (sT0, sROT), S(sROT), S(sT0))
        S_(e, "s_cmp_ge_u32 s%d, 9" % sROT, S(sROT), ["scc"])
        S_(e, "s_cselect_b32 s%d, s%d, s%d" % (sROT, sT0, sROT), S(sT0) + S(sROT), S(sROT))
    else:
        S_(e, "s_mov_b32 s%d, 0" % sROT, [], S(sROT))
    S_(e, "s_mul_i32 s%d, s%d, %d" % (sXB, sM, 128 * 1152), S(sM), S(sXB))
    chunk_entry(G, 0)
    t = vTMP
    e.valu("v_lshrrev_b32 v%d, 3, v0" % t, V(0), V(t))
    e.valu("v_and_b32 v%d, 7, v0" % (t + 1), V(0), V(t + 1))
    e.valu("v_lshrrev_b32 v%d, 1, v%d" % (t + 2, t), V(t), V(t + 2))
    S_(e, "s_and_b32 s%d, s%d, 1" % (sT0, sW), S(sW), S(sT0))
    S_(e, "s_lshl_b32 s%d, s%d, 2" % (sT1, sT0), S(sT0), S(sT1))
    e.valu("v_or_b32 v%d, s%d, v%d" % (t + 3, sT1, t + 2), S(sT1) + V(t + 2), V(t + 3))
    e.valu("v_xor_b32 v%d, v%d, v%d" % (t + 3, t + 3, t + 1), V(t + 3) + V(t + 1), V(t + 3))
    S_(e, "s_lshl_b32 s%d, s%d, 3" % (sT1, sW), S(sW), S(sT1))
    e.valu("v_add_u32 v%d, s%d, v%d" % (t + 4, sT1, t), S(sT1) + V(t), V(t + 4))
    e.valu("v_mul_u32_u24 v%d, 1152, v%d" % (vDX, t + 4), V(t + 4), V(vDX))
    e.valu("v_lshl_add_u32 v%d, v%d, 4, v%d" % (vDX, t + 3, vDX), V(t + 3) + V(vDX), V(vDX))
    e.valu("v_bfe_u32 v%d, v0, 2, 3" % t, V(0), V(t))
    e.valu("v_add_u32 v%d, s%d, v%d" % (t, sT1, t), S(sT1) + V(t), V(t))
    e.valu("v_mul_u32_u24 v%d, 9216, v%d" % (vDW, t), V(t), V(vDW))
    e.valu("v_lshrrev_b32 v%d, 5, v0" % (t + 1), V(0), V(t + 1))
    e.valu("v_lshl_add_u32 v%d, v%d, 6, v%d" % (vDW, t + 1, vDW), V(t + 1) + V(vDW), V(vDW))
    S_(e, "s_lshl_b32 s%d, s%d, 1" % (sT0, sT0), S(sT0), S(sT0))
    e.valu("v_and_b32 v%d, 3, v0" % (t + 2), V(0), V(t + 2))
    e.valu("v_xor_b32 v%d, s%d, v%d" % (t + 2, sT0, t + 2), S(sT0) + V(t + 2), V(t + 2))
    e.valu("v_lshl_add_u32 v%d, v%d, 4, v%d" % (vDW, t + 2, vDW), V(t + 2) + V(vDW), V(vDW))
    S_(e, "s_cmp_eq_u32 s%d, 3" % sNQ, S(sNQ), ["scc"])
    S_(e, "s_cselect_b32 s%d, 1, 0" % sT0, [], S(sT0))
    S_(e, "s_lshl2_add_u32 s3, s%d, s%d" % (sNQ, sT0), S(sNQ) + S(sT0), S(3))
    S_(e, "s_mul_i32 s%d, s%d, 5" % (sDBB, sNQ), S(sNQ), S(sDBB))
    S_(e, "s_sub_u32 s%d, s%d, s%d" % (sDBB, sDBB, sT0), S(sDBB) + S(sT0), S(sDBB))
    S_(e, "s_lshl_b32 s%d, s%d, 6" % (sDBB, sDBB), S(sDBB), S(sDBB))
    S_(e, "s_mul_i32 s%d, s%d, 2304" % (sT0, sKQ), S(sKQ), S(sT0))
    S_(e, "s_lshl_b32 s%d, s3, 7" % sT1, S(3), S(sT1))
    S_(e, "s_add_u32 s83, s%d, s%d" % (sT0, sT1), S(sT0) + S(sT1), S(83))
    e.valu("v_add_u32 v%d, s83, v%d" % (vDW, vDW), S(83) + V(vDW), V(vDW))
    if OPT["prot"]:
        assert OPT["stamps"] in (0, 2) and not OPT["trace"]
        S_(e, "s_lshr_b32 s%d, s%d, 1" % (sNP, sNQ), S(sNQ), S(sNP))
        S_(e, "s_add_u32 s%d, s%d, 4" % (sNP, sNP), S(sNP), S(sNP))
        S_(e, "s_and_b32 s%d, s%d, 7" % (sPI, sM), S(sM), S(sPI))
        S_(e, "s_sub_u32 s%d, s%d, s%d" % (sT0, sPI, sNP), S(sPI) + S(sNP), S(sT0))
        S_(e, "s_cmp_ge_u32 s%d, s%d" % (sPI, sNP), S(sPI) + S(sNP), ["scc"])
        S_(e, "s_cselect_b32 s%d, s%d, s%d" % (sPI, sT0, sPI), S(sT0) + S(sPI), S(sPI))
        e.valu("v_lshl_add_u32 v%d, s%d, 7, v%d" % (vDW, sPI, vDW), S(sPI) + V(vDW), V(vDW))
    S_(e, "s_mov_b32 s%d, 0x%x" % (SX + 2, 2048 * 576 * 2), [], S(SX + 2))
    S_(e, "s_mov_b32 s%d, 0x20000" % (SX + 3), [], S(SX + 3))
    S_(e, "s_mov_b32 s%d, 0x%x" % (SW1 + 2, 576 * 4608 * 2), [], S(SW1 + 2))
    S_(e, "s_mov_b32 s%d, 0x20000" % (SW1 + 3), [], S(SW1 + 3))
    if OPT["cpe"]: cpf_block(G)
    e.raw("s_waitcnt lgkmcnt(0)"); e.pos += 1
    S_(e, "s_mov_b64 %s, s[64:65]" % sr(SX, 2), [], S(SX, 2))
    S_(e, "s_mov_b64 %s, s[66:67]" % sr(SW1, 2), [], S(SW1, 2))
    G.stamp()

def prologue_b(G):
    e = G.e
    t = vTMP
    S_(e, "s_and_b32 s%d, s%d, 3" % (sTG, sW), S(sW), S(sTG))
    S_(e, "s_lshr_b32 s%d, s%d, 2" % (sG, sW), S(sW), S(sG))
    e.valu("v_lshlrev_b32 v%d, 4, v0" % vL16, V(0), V(vL16))
    sRHO = sWM
    S_(e, "s_and_b32 s%d, s%d, 1" % (sRHO, sTG), S(sTG), S(sRHO))
    S_(e, "s_xor_b32 s%d, s%d, s%d" % (sRHO, sRHO, sG), S(sRHO) + S(sG), S(sRHO))
    e.valu("v_lshrrev_b32 v%d, 4, v0" % t, V(0), V(t))
    e.valu("v_bfe_u32 v%d, v0, 2, 2" % (t + 1), V(0), V(t + 1))
    e.valu("v_and_b32 v%d, 3, v0" % (t + 2), V(0), V(t + 2))
    e.valu("v_and_b32 v%d, 1, v%d" % (t + 3, t), V(t), V(t + 3))
    e.valu("v_lshlrev_b32 v%d, 10, v%d" % (t + 4, t), V(t), V(t + 4))
    e.valu("v_lshl_add_u32 v%d, v%d, 6, v%d" % (t + 4, t + 1, t + 4), V(t + 1) + V(t + 4), V(t + 4))
    e.valu("v_lshl_add_u32 v%d, v%d, 3, v%d" % (t + 4, t + 2, t + 4), V(t + 2) + V(t + 4), V(t + 4))
    S_(e, "s_lshr_b32 s%d, s%d, 1" % (sT0, sTG), S(sTG), S(sT0))
    e.valu("v_xor_b32 v%d, s%d, v%d" % (t + 3, sT0, t + 3), S(sT0) + V(t + 3), V(t + 3))
    e.valu("v_lshl_add_u32 v%d, v%d, 5, v%d" % (t + 5, t + 3, t + 4), V(t + 3) + V(t + 4), V(t + 5))
    e.valu("v_xor_b32 v%d, 32, v%d" % (t + 6, t + 5), V(t + 5), V(t + 6))
    for kp in range(2):
        S_(e, "s_xor_b32 s%d, s%d, %d" % (sT0, sRHO, kp), S(sRHO), S(sT0))
        S_(e, "s_lshl_b32 s%d, s%d, 12" % (sT0, sT0), S(sT0), S(sT0))
        S_(e, "s_lshl_b32 s%d, s%d, 9" % (sT1, sG), S(sG), S(sT1))
        S_(e, "s_add_u32 s%d, s%d, s%d" % (sT0, sT0, sT1), S(sT0) + S(sT1), S(sT0))
        for a in range(2):
            e.valu("v_add_u32 v%d, s%d, v%d" % (vA + 2 * a + kp, sT0, t + 5 + a), S(sT0) + V(t + 5 + a), V(vA + 2 * a + kp))
    e.valu("v_and_b32 v%d, 15, v0" % (t + 1), V(0), V(t + 1))
    e.valu("v_lshrrev_b32 v%d, 1, v%d" % (t + 2, t + 1), V(t + 1), V(t + 2))
    e.valu("v_xor_b32 v%d, v%d, v%d" % (t + 2, t + 2, t), V(t + 2) + V(t), V(t + 2))
    S_(e, "s_lshl_b32 s%d, s%d, 12" % (sT0, sTG), S(sTG), S(sT0))
    e.valu("v_lshlrev_b32 v%d, 7, v%d" % (t + 1, t + 1), V(t + 1), V(t + 1))
    e.valu("v_add_u32 v%d, s%d, v%d" % (t + 1, sT0, t + 1), S(sT0) + V(t + 1), V(t + 1))
    for kp in range(2):
        S_(e, "s_xor_b32 s%d, s%d, %d" % (sT0, sRHO, kp), S(sRHO), S(sT0))
        S_(e, "s_lshl_b32 s%d, s%d, 2" % (sT0, sT0), S(sT0), S(sT0))
        e.valu("v_xor_b32 v%d, s%d, v%d" % (t + 3, sT0, t + 2), S(sT0) + V(t + 2), V(t + 3))
        e.valu("v_lshl_add_u32 v%d, v%d, 4, v%d" % (vXA[kp], t + 3, t + 1), V(t + 3) + V(t + 1), V(vXA[kp]))
    for i in range(4):
        e.valu("v_mov_b32 v%d, 0x3f803f80" % (vONES + i), [], V(vONES + i))
    S_(e, "s_lshl_b64 %s, 1, s%d" % (sr(sWM, 2), sW), S(sW), S(sWM, 2))
    srd(e, SWS, 78, 0x4000000)
    srd(e, SDBG, 76, 256)
    S_(e, "s_or_b32 s%d, s2, s%d" % (sNZ, sW), S(sW), S(sNZ))

def deferred_setup():
    L = []
    def f1(G):
        e = G.e
        srd(e, SB1, 68, 4608 * 2); srd(e, SB2, 72, 576 * 2)
        S_(e, "s_mov_b32 m0, %d" % L_B1, [], ["m0"])
        e.ins("buffer_load_dwordx4 v%d, %s, s83 offen lds" % (vL16, sr(SB1, 4)), "dma", V(vL16) + S(SB1, 4) + S(83) + ["m0"], [])
        S_(e, "s_mov_b32 m0, %d" % L_B2, [], ["m0"])
        G.misc["btok"] = e.ins("buffer_load_dwordx4 v%d, %s, s%d offen lds" % (vL16, sr(SB2, 4), sDBB), "dma", V(vL16) + S(SB2, 4) + S(sDBB) + ["m0"], [])
    L.append(f1)
    def f2(G):
        e = G.e
        srd(e, SW2, 70, 4608 * 576 * 2); srd(e, SOUT, 74, 2048 * 576 * 2)
        S_(e, "s_mov_b32 s%d, s3" % sPB, S(3), S(sPB))
        S_(e, "s_cmp_ge_u32 s%d, 2" % sTG, S(sTG), ["scc"])
        S_(e, "s_cselect_b64 vcc, -1, 0", [], ["vcc"])
    L.append(f2)
    def f3(G):
        e = G.e
        S_(e, "s_lshl2_add_u32 s%d, s%d, s%d" % (sT0, sM, sKQ), S(sM) + S(sKQ), S(sT0))
        S_(e, "s_lshl2_add_u32 s%d, s%d, s%d" % (sT0, sT0, sNQ), S(sT0) + S(sNQ), S(sT0))
        S_(e, "s_lshl_b32 s%d, s%d, 7" % (sT0, sT0), S(sT0), S(sT0))
        S_(e, "s_add_u32 s%d, s%d, 0x%x" % (sF1R, sT0, WS_F1), S(sT0), S(sF1R))
        S_(e, "s_lshl2_add_u32 s%d, s%d, s%d" % (sT0, sM, sNQ), S(sM) + S(sNQ), S(sT0))
        S_(e, "s_lshl2_add_u32 s%d, s%d, s%d" % (sT0, sT0, sKQ), S(sT0) + S(sKQ), S(sT0))
        S_(e, "s_lshl_b32 s%d, s%d, 7" % (sT0, sT0), S(sT0), S(sT0))
        S_(e, "s_add_u32 s%d, s%d, 0x%x" % (sF2R, sT0, WS_F2), S(sT0), S(sF2R))
    L.append(f3)
    def f4(G):
        e = G.e
        S_(e, "s_lshl_b32 s%d, s%d, 8" % (sCSR, sG), S(sG), S(sCSR))
        S_(e, "s_add_u32 s%d, s%d, %d" % (sCSR, sCSR, L_CS), S(sCSR), S(sCSR))
        S_(e, "s_lshl2_add_u32 s%d, s%d, s%d" % (sCSW, sTG, sCSR), S(sTG) + S(sCSR), S(sCSW))
        S_(e, "s_lshr_b32 s%d, s%d, 1" % (sT0, sTG), S(sTG), S(sT0))
        S_(e, "s_lshl3_add_u32 s%d, s%d, s%d" % (sCSR, sT0, sCSR), S(sT0) + S(sCSR), S(sCSR))
        S_(e, "s_lshl1_add_u32 s%d, s%d, s%d" % (sB1A, sG, sT0), S(sG) + S(sT0), S(sB1A))
        S_(e, "s_lshl_b32 s%d, s%d, 5" % (sB1A, sB1A), S(sB1A), S(sB1A))
        S_(e, "s_add_u32 s%d, s%d, %d" % (sB1A, sB1A, L_B1), S(sB1A), S(sB1A))
    L.append(f4)
    def f4b(G):
        e = G.e
        if not OPT["prot"]: return
        for (tab, n) in ((sRA, 4), (sRB, 5)):
            S_(e, "s_and_b32 s%d, s%d, 7" % (sT0, sM), S(sM), S(sT0))
            S_(e, "s_sub_u32 s%d, s%d, %d" % (sT1, sT0, n), S(sT0), S(sT1))
            S_(e, "s_cmp_ge_u32 s%d, %d" % (sT0, n), S(sT0), ["scc"])
            S_(e, "s_cselect_b32 s%d, s%d, s%d" % (sT0, sT1, sT0), S(sT0) + S(sT1), S(sT0))
            if True:
                pass
            for i in range(n):
                S_(e, "s_mul_i32 s%d, s%d, %d" % (tab + i, sT0, 64 * 1152), S(sT0), S(tab + i))
                if i < n - 1:
                    S_(e, "s_add_u32 s%d, s%d, 1" % (sT0, sT0), S(sT0), S(sT0))
                    S_(e, "s_cmp_eq_u32 s%d, %d" % (sT0, n), S(sT0), ["scc"])
                    S_(e, "s_cselect_b32 s%d, 0, s%d" % (sT0, sT0), S(sT0), S(sT0))
        assert not G.misc.get("pi_moved")
        S_(e, "s_lshl_b32 s%d, s%d, 7" % (sT0, sNP), S(sNP), S(sT0))
        S_(e, "s_add_u32 s%d, s%d, s%d" % (sB1E, sB1A, sT0), S(sB1A) + S(sT0), S(sB1E))
        S_(e, "s_lshl_b32 s%d, s%d, 7" % (sT0, sPI), S(sPI), S(sT0))
        S_(e, "s_add_u32 s%d, s%d, s%d" % (sB1A, sB1A, sT0), S(sB1A) + S(sT0), S(sB1A))
    L.append(f4b)
    def f5(G):
        e = G.e
        S_(e, "s_mul_i32 s%d, s%d, 36" % (sT0, sKQ), S(sKQ), S(sT0))
        S_(e, "s_add_u32 s%d, s%d, s%d" % (sT0, sT0, sG), S(sT0) + S(sG), S(sT0))
        S_(e, "s_mul_i32 s%d, s%d, 144" % (sT1, sM), S(sM), S(sT1))
        S_(e, "s_add_u32 s%d, s%d, s%d" % (sT0, sT0, sT1), S(sT0) + S(sT1), S(sT0))
        S_(e, "s_lshl2_add_u32 s%d, s%d, s%d" % (sT0, sT0, sTG), S(sT0) + S(sTG), S(sT0))
        S_(e, "s_lshl_b32 s%d, s%d, 11" % (sHB, sT0), S(sT0), S(sHB))
        S_(e, "s_mul_i32 s%d, s%d, %d" % (sPS, sKQ, 1152 * 1152), S(sKQ), S(sPS))
    L.append(f5)
    for k in range(4):
        def f6(G, k=k):
            e = G.e
            n = sT0
            if k == 0: S_(e, "s_mov_b32 s%d, s%d" % (n, sNQ), S(sNQ), S(n))
            elif k == 1: S_(e, "s_xor_b32 s%d, s%d, 1" % (n, sNQ), S(sNQ), S(n))
            else:
                S_(e, "s_xor_b32 s%d, s%d, 2" % (n, sNQ), S(sNQ), S(n))
                S_(e, "s_and_b32 s%d, s%d, 2" % (n, n), S(n), S(n))
                if k == 3: S_(e, "s_add_u32 s%d, s%d, 1" % (n, n), S(n), S(n))
            S_(e, "s_cmp_eq_u32 s%d, 3" % n, S(n), ["scc"])
            S_(e, "s_cselect_b32 s%d, 1, 0" % sT1, [], S(sT1))
            S_(e, "s_lshl2_add_u32 s%d, s%d, s%d" % (n, n, sT1), S(n) + S(sT1), S(n))
            S_(e, "s_lshl_b32 s%d, s%d, 14" % (sHL + k, n), S(n), S(sHL + k))
            S_(e, "s_add_u32 s%d, s%d, s%d" % (sHL + k, sHL + k, sHB), S(sHL + k) + S(sHB), S(sHL + k))
            S_(e, "s_mul_i32 s%d, s%d, %d" % (sW2 + k, n, 64 * 1152), S(n), S(sW2 + k))
            S_(e, "s_add_u32 s%d, s%d, s%d" % (sW2 + k, sW2 + k, sPS), S(sW2 + k) + S(sPS), S(sW2 + k))
            if k == 3: S_(e, "s_mov_b32 s%d, s%d" % (sHB, sHL), S(sHL), S(sHB))
        L.append(f6)
    def f8(G):
        e = G.e
        S_(e, "s_lshl2_add_u32 s%d, s%d, s%d" % (sT0, sM, sNQ), S(sM) + S(sNQ), S(sT0))
        S_(e, "s_mul_i32 s%d, s%d, 160" % (sT0, sT0), S(sT0), S(sT0))
        S_(e, "s_lshl3_add_u32 s%d, s%d, s%d" % (sT0, sTG, sT0), S(sTG) + S(sT0), S(sT0))
        S_(e, "s_add_u32 s%d, s%d, s%d" % (sT0, sT0, sG), S(sT0) + S(sG), S(sT0))
        S_(e, "s_lshl_b32 s%d, s%d, 11" % (sT0, sT0), S(sT0), S(sT0))
        S_(e, "s_add_u32 s%d, s%d, 0x%x" % (sPS, sT0, WS_PART), S(sT0), S(sPS))
    L.append(f8)
    def f9(G):
        e = G.e
        t = vTMP
        e.valu("v_bfe_u32 v%d, v0, 4, 1" % t, V(0), V(t))
        e.valu("v_lshlrev_b32 v%d, 1, v%d" % (t, t), V(t), V(t))
        e.valu("v_and_b32 v%d, 3, v0" % (t + 1), V(0), V(t + 1))
        e.valu("v_xor_b32 v%d, v%d, v%d" % (t, t, t + 1), V(t, 2), V(t))
        S_(e, "s_and_b32 s%d, s%d, 1" % (sT0, sTG), S(sTG), S(sT0))
        S_(e, "s_lshl1_add_u32 s%d, s%d, s%d" % (sT0, sG, sT0), S(sG) + S(sT0), S(sT0))
        S_(e, "s_lshl_b32 s%d, s%d, 4" % (sT0, sT0), S(sT0), S(sT0))
        e.valu("v_lshrrev_b32 v%d, 2, v0" % (t + 1), V(0), V(t + 1))
        e.valu("v_add_u32 v%d, s%d, v%d" % (t + 1, sT0, t + 1), S(sT0) + V(t + 1), V(t + 1))
        e.valu("v_mul_u32_u24 v%d, 1152, v%d" % (vDH, t + 1), V(t + 1), V(vDH))
        e.valu("v_lshl_add_u32 v%d, v%d, 4, v%d" % (vDH, t, vDH), V(t) + V(vDH), V(vDH))
    L.append(f9)
    return [OT(f) for f in L]

def cols_setup(G):
    e = G.e
    assert len(G.misc["cent"]) == 9
    S_(e, "s_cmp_eq_u32 s%d, 1" % sNQ, S(sNQ), ["scc"])
    S_(e, "s_cselect_b32 s%d, 64, 0" % sLB, [], S(sLB))
    S_(e, "s_add_u32 s%d, s%d, 256" % (sCOL + 2, sLB), S(sLB), S(sCOL + 2))
    S_(e, "s_add_u32 s%d, s%d, s%d" % (sLB, sLB, sDBB), S(sLB) + S(sDBB), S(sLB))
    S_(e, "s_xor_b32 s%d, s%d, 2" % (sT0, sKQ), S(sKQ), S(sT0))
    S_(e, "s_and_b32 s%d, s%d, 2" % (sT0, sT0), S(sT0), S(sT0))
    S_(e, "s_lshl_b32 s%d, s%d, 6" % (sT0, sT0), S(sT0), S(sT0))
    S_(e, "s_add_u32 s%d, s%d, s%d" % (sCOL, sT0, sLB), S(sT0) + S(sLB), S(sCOL))
    S_(e, "s_xor_b32 s%d, s%d, 1" % (sT0, sKQ), S(sKQ), S(sT0))
    S_(e, "s_lshl_b32 s%d, s%d, 6" % (sT0, sT0), S(sT0), S(sT0))
    S_(e, "s_add_u32 s%d, s%d, s%d" % (sCOL + 1, sT0, sLB), S(sT0) + S(sLB), S(sCOL + 1))
    S_(e, "s_lshl_b32 s%d, s%d, 6" % (sT0, sKQ), S(sKQ), S(sT0))
    S_(e, "s_add_u32 s%d, s%d, s%d" % (sCOL + 3, sT0, sLB), S(sT0) + S(sLB), S(sCOL + 3))

def dw_block(G, lines, regs=(), sreg=None, wave=0):
    e = G.e
    e._autowait(list(regs))
    e.nop(max(e._need("valu", list(regs), list(regs), "x"), 0))
    lab = G.newlabel("dw")
    e.raw("s_cmp_eq_u32 s%d, %d" % (sW if sreg is None else sreg, wave)); e.raw("s_cbranch_scc0 %s" % lab); e.pos += 2
    for l in lines:
        if l.endswith(":"): e.label(l[:-1])
        else: e.raw(l)
    e.label(lab)
    for r in regs: e.lastw[r] = ("valu", e.pos - 1, None)

def flag_store(G, srdreg, sread, sown, val, tmp):
    dw_block(G, ["s_add_u32 s%d, s%d, %d" % (sT1, sE, val),
                 "v_mov_b32 v%d, s%d" % (tmp, sT1),
                 "v_mov_b32 v%d, s%d" % (tmp + 1, sE + 1),
                 "s_mul_i32 s%d, s%d, 120" % (sT0, sown),
                 "s_sub_u32 s%d, s%d, s%d" % (sT0, sread, sT0),
                 "s_lshl_b32 s%d, s%d, 3" % (sT1, sown),
                 "s_lshl_b32 s%d, 1, s%d" % (sT1, sT1),
                 "s_andn2_b32 exec_lo, 0x01010101, s%d" % sT1,
                 "s_mov_b32 exec_hi, 0",
                 "buffer_store_dwordx2 %s, v%d, %s, s%d offen sc1" % (vr(tmp, 2), vL16, sr(srdreg, 4), sT0),
                 "s_mov_b64 exec, -1"], V(tmp, 2))

def nonce_store(G):
    t = vTMP
    dw_block(G, ["s_and_b32 s%d, s%d, 0xfffffff0" % (sE, sE),
                 "s_or_b32 s%d, s%d, 0x80000000" % (sE + 1, sE + 1),
                 "v_mov_b32 v%d, s%d" % (t, sE),
                 "v_mov_b32 v%d, s%d" % (t + 1, sE + 1),
                 "s_mov_b64 exec, 1",
                 "buffer_store_dwordx2 %s, off, %s, 0 sc1" % (vr(t, 2), sr(SDBG, 4)),
                 "s_mov_b64 exec, -1"], V(t, 2), sreg=sNZ)

def touch(G, vaddr, srdreg, soff, mask_lo, mask_hi):
    e = G.e
    S_(e, "s_mov_b32 m0, %d" % L_SCR, [], ["m0"])
    S_(e, "s_mov_b32 exec_lo, 0x%x" % mask_lo, [], ["exec"])
    S_(e, "s_mov_b32 exec_hi, 0x%x" % mask_hi, [], ["exec"])
    tok = e.ins("buffer_load_dword v%d, %s, s%d offen lds" % (vaddr, sr(srdreg, 4), soff), "dma", V(vaddr) + S(srdreg, 4) + S(soff) + ["m0"], [])
    S_(e, "s_mov_b64 exec, -1", [], ["exec"])
    return tok

def touch_lines(nl):
    m = (1 << nl) - 1
    return ["s_mov_b32 m0, %d" % L_SCR, "s_mov_b32 exec_lo, 0x%x" % (m & 0xffffffff), "s_mov_b32 exec_hi, 0x%x" % (m >> 32)]

def touch_w1_piece(pair, piece, wave):
    t = vX1
    def f(G):
        dw_block(G, ["v_mul_u32_u24 v%d, 9216, v0" % t,
                     "s_and_b32 s%d, s%d, 7" % (sT0, sM),
                     "s_mul_i32 s%d, s%d, %d" % (sT0, sT0, 72 * 9216),
                     "s_mul_i32 s%d, s%d, 2304" % (sT1, sKQ),
                     "s_add_u32 s%d, s%d, s%d" % (sT0, sT0, sT1),
                     "s_lshl_b32 s%d, s%d, 7" % (sT1, sPB),
                     "s_add_u32 s%d, s%d, s%d" % (sT0, sT0, sT1),
                     "s_add_u32 s%d, s%d, %d" % (sT0, sT0, piece * 36 * 9216 + pair * 128)] + touch_lines(36) +
                    ["buffer_load_dword v%d, %s, s%d offen lds" % (t, sr(SW1, 4), sT0), "s_mov_b64 exec, -1"], V(t), wave=wave)
    return OT(f)

def tlb_items():
    t = vX1
    sh = OPT["tlbs"]
    L = []
    def mk(srdreg, setup, nbytes, wave):
        nl = min(64, -(-nbytes >> sh) + 1)
        def f(G):
            dw_block(G, ["v_lshlrev_b32 v%d, %d, v0" % (t, sh)] + setup + touch_lines(nl) +
                     ["buffer_load_dword v%d, %s, s%d offen lds" % (t, sr(srdreg, 4), sT0), "s_mov_b64 exec, -1"], V(t), wave=wave)
        L.append(OT(f))
    mk(SWS, ["s_lshl2_add_u32 s%d, s%d, s%d" % (sT0, sM, sKQ), "s_mul_i32 s%d, s%d, %d" % (sT0, sT0, 36 * 8192)], 36 * 8192, 3)
    mk(SWS, ["s_lshl2_add_u32 s%d, s%d, s%d" % (sT0, sM, sNQ), "s_mul_i32 s%d, s%d, %d" % (sT0, sT0, 160 * 2048),
             "s_add_u32 s%d, s%d, 0x%x" % (sT0, sT0, WS_PART)], 160 * 2048, 5)
    mk(SOUT, ["s_mul_i32 s%d, s%d, %d" % (sT0, sM, 128 * 1152)], 128 * 1152, 6)
    return L

def touch_w2_pieceA(piece, wave):
    t = vX1
    def f(G):
        e = G.e
        S_(e, "s_and_b32 s%d, s%d, 2" % (sT0, sNQ), S(sNQ), S(sT0))
        S_(e, "s_lshl2_add_u32 s%d, s%d, s%d" % (sT0, sT0, sW), S(sT0) + S(sW), S(sT0))
        dw_block(G, ["v_lshlrev_b32 v%d, 7, v0" % t,
                     "s_and_b32 s%d, s%d, 7" % (sT0, sM),
                     "s_lshl1_add_u32 s%d, s%d, s%d" % (sT0, sT0, sNQ),
                     "s_mul_i32 s%d, s%d, %d" % (sT0, sT0, 648 * 128),
                     "s_mul_i32 s%d, s%d, %d" % (sT1, sKQ, 1152 * 1152),
                     "s_add_u32 s%d, s%d, s%d" % (sT0, sT0, sT1),
                     "s_add_u32 s%d, s%d, %d" % (sT0, sT0, piece * 54 * 128)] + touch_lines(54) +
                    ["buffer_load_dword v%d, %s, s%d offen lds" % (t, sr(SW2, 4), sT0), "s_mov_b64 exec, -1"], V(t), sreg=sT0, wave=wave)
    return OT(f)

def touch_w2_piece(piece, npiece, wave):
    nl = min(-(-324 // npiece), 64)
    t = vX1
    def f(G):
        dw_block(G, ["v_lshlrev_b32 v%d, 7, v0" % t,
                     "s_and_b32 s%d, s%d, 7" % (sT0, sM),
                     "s_lshl2_add_u32 s%d, s%d, s%d" % (sT0, sT0, sNQ),
                     "s_mul_i32 s%d, s%d, %d" % (sT0, sT0, 324 * 128),
                     "s_mul_i32 s%d, s%d, %d" % (sT1, sKQ, 1152 * 1152),
                     "s_add_u32 s%d, s%d, s%d" % (sT0, sT0, sT1),
                     "s_add_u32 s%d, s%d, %d" % (sT0, sT0, piece * nl * 128)] + touch_lines(nl) +
                    ["buffer_load_dword v%d, %s, s%d offen%s lds" % (t, sr(SW2, 4), sT0, " nt" if OPT["nt"] & 8 else ""), "s_mov_b64 exec, -1"], V(t), wave=wave)
    return OT(f)

def init_progress(G):
    e = G.e
    S_(e, "s_lshl_b64 %s, 1, s%d" % (sr(sWM, 2), sW), S(sW), S(sWM, 2))
    S_(e, "s_mov_b64 exec, %s" % sr(sWM, 2), S(sWM, 2), ["exec"])
    tok = e.ins("ds_write_b32 v%d, v%d offset:%d" % (vL16, vX0, L_PW), "dswrite", V(vL16) + V(vX0), [])
    S_(e, "s_lshl_b32 s%d, s%d, 2" % (sT0, sG), S(sG), S(sT0))
    S_(e, "s_lshl_b32 s%d, 15, s%d" % (sGM, sT0), S(sT0), S(sGM))
    S_(e, "s_mov_b64 exec, -1", [], ["exec"])
    return tok

def arrive(G, s, tmp):
    e = G.e
    e.valu("v_mov_b32 v%d, %d" % (tmp, s + 1), [], V(tmp))
    S_(e, "s_mov_b64 exec, %s" % sr(sWM, 2), S(sWM, 2), ["exec"])
    e.ins("ds_write_b32 v%d, v%d offset:%d" % (vL16, tmp, L_PW), "dswrite", V(vL16) + V(tmp), [])
    S_(e, "s_mov_b64 exec, -1", [], ["exec"])

def sync_issue(G, tmp):
    G.e.ins("ds_read_b32 v%d, v%d offset:%d" % (tmp, vL16, L_PW), "dsread", V(vL16), V(tmp))

def sync_check(G, s, tmp, sameg=False):
    e = G.e
    pr = sMK + 6
    pr2 = sMK + 4
    lok = G.newlabel("bk"); lsp = G.newlabel("bs")
    def cond(raw):
        if raw:
            e.raw("v_cmp_gt_u32 %s, %d, v%d" % (sr(pr, 2), s + 1, tmp))
            if sameg: e.raw("v_cmp_gt_u32 %s, %d, v%d" % (sr(pr2, 2), s + 2, tmp))
            e.raw("s_nop 3")
            if sameg:
                e.raw("s_and_b32 s%d, s%d, s%d" % (pr2, pr2, sGM)); e.raw("s_or_b32 s%d, s%d, s%d" % (pr, pr, pr2))
            e.raw("s_and_b32 s%d, s%d, 0xff" % (pr, pr))
        else:
            e.valu("v_cmp_gt_u32 %s, %d, v%d" % (sr(pr, 2), s + 1, tmp), V(tmp), S(pr, 2))
            if sameg:
                e.valu("v_cmp_gt_u32 %s, %d, v%d" % (sr(pr2, 2), s + 2, tmp), V(tmp), S(pr2, 2))
                S_(e, "s_and_b32 s%d, s%d, s%d" % (pr2, pr2, sGM), S(pr2) + S(sGM), S(pr2))
                S_(e, "s_or_b32 s%d, s%d, s%d" % (pr, pr, pr2), S(pr) + S(pr2), S(pr))
            S_(e, "s_and_b32 s%d, s%d, 0xff" % (pr, pr), S(pr), S(pr) + ["scc"])
    cond(False)
    e.raw("s_cbranch_scc0 %s" % lok); e.pos += 1
    e.label(lsp)
    e.raw("s_sleep 1")
    e.raw("ds_read_b32 v%d, v%d offset:%d" % (tmp, vL16, L_PW))
    e.raw("s_waitcnt lgkmcnt(0)")
    cond(True)
    e.raw("s_cbranch_scc1 %s" % lsp)
    e.label(lok)

def setup_F_voffset():
    a, b = vQ + 2, vQ + 3
    L = []
    L.append(VA("v_bfe_u32 v%d, v0, 2, 3" % a, V(0), V(a)))
    L.append(VA("v_lshl_add_u32 v%d, s%d, 3, v%d" % (a, sW, a), S(sW) + V(a), V(a)))
    L.append(VA("v_mul_u32_u24 v%d, 1152, v%d" % (vDF, a), V(a), V(vDF)))
    L.append(VA("v_lshrrev_b32 v%d, 5, v0" % a, V(0), V(a)))
    L.append(VA("v_lshl_add_u32 v%d, v%d, 6, v%d" % (vDF, a, vDF), V(a) + V(vDF), V(vDF)))
    L.append(VA("v_bfe_u32 v%d, v0, 4, 1" % a, V(0), V(a)))
    L.append(VA("v_lshlrev_b32 v%d, 1, v%d" % (a, a), V(a), V(a)))
    L.append(VA("v_and_b32 v%d, 3, v0" % b, V(0), V(b)))
    L.append(VA("v_xor_b32 v%d, v%d, v%d" % (a, a, b), V(a) + V(b), V(a)))
    L.append(VA("v_lshl_add_u32 v%d, v%d, 4, v%d" % (vDF, a, vDF), V(a) + V(vDF), V(vDF)))
    L.append(OT(lambda G: G.misc.__setitem__("F_ready", 1)))
    return L

def setup_P2_addr():
    a, b = vQ + 2, vQ + 3
    F0, F1, H0, H1 = vP2
    L = []
    L.append(VA("v_bfe_u32 v%d, v0, 2, 3" % a, V(0), V(a)))
    L.append(VA("v_lshlrev_b32 v%d, 6, v%d" % (a, a), V(a), V(a)))
    L.append(VA("v_and_b32 v%d, 3, v0" % b, V(0), V(b)))
    L.append(VA("v_lshl_add_u32 v%d, v%d, 3, v%d" % (a, b, a), V(a) + V(b), V(a)))
    L.append(VA("v_bfe_u32 v%d, v0, 4, 1" % b, V(0), V(b)))
    L.append(VA("v_xor_b32 v%d, s%d, v%d" % (b, sG, b), S(sG) + V(b), V(b)))
    L.append(VA("v_lshl_add_u32 v%d, v%d, 5, v%d" % (a, b, a), V(a) + V(b), V(a)))
    L.append(VA("v_lshl_add_u32 v%d, s%d, 12, v%d" % (a, sG, a), S(sG) + V(a), V(a)))
    L.append(VA("v_lshrrev_b32 v%d, 5, v0" % b, V(0), V(b)))
    def chk(G): assert G.misc.get("w1_left", 1) == 0, "w1 DMAs outstanding"
    L.append(OT(chk))
    L.append(VA("v_lshl_add_u32 v%d, v%d, 10, v%d" % (F0, b, a), V(a) + V(b), V(F0)))
    L.append(VA("v_lshl_add_u32 v%d, v%d, 9, v%d" % (H0, b, a), V(a) + V(b), V(H0)))
    L.append(VA("v_xor_b32 v%d, 32, v%d" % (F1, F0), V(F0), V(F1)))
    L.append(VA("v_xor_b32 v%d, 32, v%d" % (H1, H0), V(H0), V(H1)))
    def rb(G):
        for r in vP2: G.base[r] = 0
    L.append(OT(rb))
    return L

def korder(typ):
    if typ == "A":
        o = [(0, 2)] + [(s, 0) for s in (0, 1, 2, 3)] + [(s, 1) for s in (0, 1, 2, 3)] + [(0, 3)] + \
            [(s, 2) for s in (1, 2, 3)] + [(s, 3) for s in (1, 2, 3)] + [(2, 4), (3, 4)]
    else:
        o = [(0, 3)] + [(s, 0) for s in (0, 1, 2, 3)] + [(s, 1) for s in (0, 1, 2, 3)] + [(0, 4)] + \
            [(s, 2) for s in (0, 1, 2, 3)] + [(s, 3) for s in (1, 2, 3)] + [(1, 4)]
    assert len(o) == 18
    regs = {}
    blk = 0
    for i, k in enumerate(o):
        if i == 0: regs[k] = HOWN
        else:
            regs[k] = XF + 8 * blk; blk += 1
    return o, regs

def plan(typ):
    npair = 4 if typ == "A" else 5
    stages = []
    for c in range(9):
        stages.append(dict(kind="X", c=c, units=[("x", c, 0), ("x", c, 1), ("w1", 0, c)]))
    for p in range(1, npair):
        for j in range(3):
            stages.append(dict(kind="W", p=p, j=j, units=[("w1", p, 3 * j + i) for i in range(3)]))
    if not OPT["phase1_only"]:
        for j in range(9):
            u = [("F", 2 * j), ("F", 2 * j + 1), ("H", 1, j)]
            if typ == "A": u.append(("H", 2, j))
            stages.append(dict(kind="PA", j=j, units=u))
        for j in range(3):
            stages.append(dict(kind="PB", j=j, units=[("H", 3, 3 * j + i) for i in range(3)]))
    return stages

def p2_quads(typ):
    npair = 4 if typ == "A" else 5
    last = ACC[(npair - 1) % 2]; other = ACC[npair % 2]
    early = [other + 4 * i for i in range(4)] + [vQ, vQ + 4, XF + 136, XF + 140, vONES, vCS]
    late = [last + 4 * i for i in range(4)] + [vBC, 96]
    allq = early + late
    nts = 4 if typ == "A" else 3
    d = {}
    i = 0
    for ts in range(nts):
        for a in range(2):
            for b in range(2):
                d[(ts, a, b)] = allq[i]; i += 1
    return d

def build_hgs(typ, stages):
    hgs = []
    ko, hreg = korder(typ)
    quads = p2_quads(typ)
    nts = 4 if typ == "A" else 3
    for s, st in enumerate(stages):
        if st["kind"] in ("X", "W"):
            p = 0 if st["kind"] == "X" else st["p"]
            chunks = [(st["c"], 2)] if st["kind"] == "X" else [(3 * st["j"] + i, i) for i in range(3)]
            for (c, ui) in chunks:
                for a in range(2):
                    reads = []
                    for kp in range(2):
                        for u in range(2):
                            reads.append((4 * kp + 2 * u, vA + 2 * a + kp, (s, ui), u * 256))
                    mf = []
                    for b in range(2):
                        acc = ACC[p % 2] + 8 * a + 4 * b
                        for kp in range(2):
                            mf.append((acc, 4 * kp, X(c, kp, b), c == 0 and kp == 0))
                    hg = dict(stage=s, reads=reads, mf=mf, p1=(p, c, a), last=(c == 8 and a == 1))
                    if st["kind"] == "X" and a == 0:
                        hg["xreads"] = [(X(c, kp, b), vXA[kp], (s, 0), b * 2048) for b in range(2) for kp in range(2)]
                    hgs.append(hg)
        elif st["kind"] == "PA":
            j = st["j"]
            order = [(ts, a) for ts in range(nts) for a in range(2)]
            if j == 8: order = [(ts, 1) for ts in range(nts)] + [(ts, 0) for ts in range(nts)]
            for (ts, a) in order:
                if True:
                    reads = []
                    for ki in range(2):
                        for u in range(2):
                            if ts < 2: reads.append((4 * ki + 2 * u, vP2[a], (s, ki), u * 2048 + ts * 512))
                            else: reads.append((4 * ki + 2 * u, vP2[2 + a], (s, ts), ki * 2048 + u * 1024))
                    mf = []
                    for b in range(2):
                        for ki in range(2):
                            mf.append((quads[(ts, a, b)], 4 * ki, hreg[ko[2 * j + ki]] + 4 * b, j == 0 and ki == 0))
                    hgs.append(dict(stage=s, reads=reads, mf=mf, lastA=(j == 8 and (ts, a) == order[-1]), hand=(ts if (j == 8 and a == 1) else None)))
        elif st["kind"] == "PB":
            j = st["j"]
            for i in range(3):
                jj = 3 * j + i
                for a in range(2):
                    reads = []
                    for ki in range(2):
                        for u in range(2):
                            reads.append((4 * ki + 2 * u, vP2[2 + a], (s, i), ki * 2048 + u * 1024))
                    mf = []
                    for b in range(2):
                        acc = quads[(a, 1, b)]
                        for ki in range(2):
                            mf.append((acc, 4 * ki, hreg[ko[2 * jj + ki]] + 4 * b, jj == 0 and ki == 0))
                    hgs.append(dict(stage=s, reads=reads, mf=mf, lastB=(jj == 8 and a == 1)))
    return hgs

def alloc_seq(typ, stages):
    seq = []
    for s, st in enumerate(stages):
        if st["kind"] == "PB" and st["j"] == 2:
            for i in range(4 if typ == "A" else 3): seq.append(("HAND", i))
        for ui in range(len(st["units"])): seq.append((s, ui))
    if not OPT["phase1_only"]:
        for i in range(2): seq.append(("HAND2", i))
    return seq

def rtab(typ, src, lev):
    t = typ if src < 2 else ("B" if typ == "A" else "A")
    return (sRA if t == "A" else sRB) + lev

def unit_dma_item(typ, stages, uid):
    s, ui = uid
    ud = stages[s]["units"][ui]
    ko, _ = korder(typ)
    def f(G):
        e = G.e
        base = G.unit_pos[uid] * UNIT
        if ud[0] == "x":
            c, half = ud[1], ud[2]
            chunk_entry(G, c)
            if half == 0: so = sKX + c
            else:
                S_(e, "s_add_u32 s%d, s%d, %d" % (sT0, sKX + c, 64 * 1152), S(sKX + c), S(sT0)); so = sT0
            G.unit_tok[uid] = G.dma(base, vDX, SX, so)
        elif ud[0] == "w1":
            p, c = ud[1], ud[2]
            if p > 0 and c == 0:
                if OPT["prot"]:
                    G.misc["pi_moved"] = 1
                    S_(e, "s_add_u32 s%d, s%d, 1" % (sT0, sPI), S(sPI), S(sT0))
                    S_(e, "s_cmp_eq_u32 s%d, s%d" % (sT0, sNP), S(sT0) + S(sNP), ["scc"])
                    S_(e, "s_cselect_b32 s%d, 0, s%d" % (sT0, sT0), S(sT0), S(sT0))
                    S_(e, "s_sub_u32 s%d, s%d, s%d" % (sT1, sT0, sPI), S(sT0) + S(sPI), S(sT1))
                    S_(e, "s_mov_b32 s%d, s%d" % (sPI, sT0), S(sT0), S(sPI))
                    e.valu("v_lshl_add_u32 v%d, s%d, 7, v%d" % (vDW, sT1, vDW), S(sT1) + V(vDW), V(vDW))
                else: e.valu("v_add_u32 v%d, 128, v%d" % (vDW, vDW), V(vDW), V(vDW))
            G.unit_tok[uid] = G.dma(base, vDW, SW1, sKW + c)
            G.misc["w1_left"] = 0 if (p == (3 if typ == "A" else 4) and c == 8) else 1
        elif ud[0] in ("F", "H"):
            G.unit_tok[uid] = G.dma(base, vDF if ud[0] == "F" else vDH, SW2, sD0)
    pre = []
    def SA(text, rd, wr): pre.append(lambda G: S_(G.e, text, rd, wr))
    if ud[0] == "x" and ud[2] == 0:
        pre.append(lambda G: chunk_entry(G, ud[1]))
    if ud[0] == "F":
        src, lev = ko[ud[1]]
        def chk(G): assert G.misc.get("F_ready")
        SA("s_add_u32 s%d, s%d, s%d" % (sD0, sW2 + src, sCOL), S(sW2 + src) + S(sCOL), S(sD0))
        if OPT["prot"]: SA("s_add_u32 s%d, s%d, s%d" % (sD0, sD0, rtab(typ, src, lev)), S(sD0), S(sD0))
        elif lev: SA("s_add_u32 s%d, s%d, %d" % (sD0, sD0, lev * 64 * 1152), S(sD0), S(sD0))
    elif ud[0] == "H":
        role, j = ud[1], ud[2]
        (s0, l0), (s1, l1) = ko[2 * j], ko[2 * j + 1]
        if OPT["prot"]:
            SA("s_add_u32 s%d, s%d, s%d" % (sD0, sW2 + s0, rtab(typ, s0, l0)), S(sW2 + s0), S(sD0))
            SA("s_add_u32 s%d, s%d, s%d" % (sD1, sW2 + s1, rtab(typ, s1, l1)), S(sW2 + s1), S(sD1))
        else:
            SA("s_add_u32 s%d, s%d, %d" % (sD0, sW2 + s0, l0 * 64 * 1152), S(sW2 + s0), S(sD0))
            SA("s_add_u32 s%d, s%d, %d" % (sD1, sW2 + s1, l1 * 64 * 1152), S(sW2 + s1), S(sD1))
        def sel(G):
            S_(G.e, "s_cmp_ge_u32 s%d, 2" % sTG, S(sTG), ["scc"])
            S_(G.e, "s_cselect_b32 s%d, s%d, s%d" % (sD0, sD1, sD0), S(sD0) + S(sD1), S(sD0))
        pre.append(sel)
        SA("s_add_u32 s%d, s%d, s%d" % (sD0, sD0, sCOL + role), S(sD0) + S(sCOL + role), S(sD0))
    return (0, f, pre)

def run_dma_item(G, it):
    for p in it[2]: p(G)
    it[1](G)

def try_alloc(G, typ, stages, seq, limit_stage):
    items = []
    while G.next_alloc < len(seq):
        uid = seq[G.next_alloc]
        if isinstance(uid[0], int) and uid[0] > limit_stage: break
        if isinstance(uid[0], int) and stages[uid[0]]["kind"] == "X":
            want = (uid[0] % 6) * 3 + uid[1] + 1
            if want not in G.free: break
            G.free.remove(want); pos = want
        else:
            if not G.free: break
            pos = G.free.pop(0)
        G.unit_pos[uid] = pos
        G.next_alloc += 1
        if isinstance(uid[0], int):
            items.append(unit_dma_item(typ, stages, uid))
    return items

def issue_hg_reads(G, hgs, upto):
    while G.hg_issued < min(upto, len(hgs)):
        h = hgs[G.hg_issued]
        if h["stage"] > G.certified: break
        buf = AFR + 8 * G.nbuf
        assert buf not in G.hgbuf.values()
        G.nbuf = (G.nbuf + 1) % NHG
        pend = []
        for (dst, reg, uid, o) in h.get("xreads", []):
            pend.append(("x", dst, reg, uid, o))
        for (d, reg, uid, o) in h["reads"]:
            pend.append(("t", buf + d, reg, uid, o))
        G.hgbuf[G.hg_issued] = buf
        G.hg_issued += 1
        G.misc.setdefault("rdq", [])
        G.misc["rdq"] = G.misc["rdq"] + pend

def emit_reads(G, n):
    q = G.misc.get("rdq", [])
    while n > 0 and q:
        k, dst, reg, uid, o = q.pop(0)
        const = G.unit_pos[uid] * UNIT + o
        if k == "x":
            off = G.off(reg, const)
            G.e.ins("ds_read_b128 %s, v%d offset:%d" % (vr(dst, 4), reg, off), "dsread", V(reg), V(dst, 4))
        else:
            if not (OPT["nord"] and G.misc.get("cur_stage", 0) > 9): G.trread(dst, reg, const)
        n -= 1
    G.misc["rdq"] = q

def set_mask(e, pair, lo, hi):
    S_(e, "s_mov_b32 s%d, 0x%x" % (pair, lo), [], S(pair))
    S_(e, "s_mov_b32 s%d, 0x%x" % (pair + 1, hi), [], S(pair + 1))

def stats_pre(G):
    e = G.e
    m1, m2, md = sMK, sMK + 2, sMK + 4
    set_mask(e, m1, 0xAAAAAAAA, 0xAAAAAAAA); set_mask(e, m2, 0xCCCCCCCC, 0xCCCCCCCC); set_mask(e, md, 0x00F0000F, 0xF0000F00)
    e.valu("v_and_b32 v%d, 15, v0" % vX0, V(0), V(vX0))
    S_(e, "s_lshl_b32 s%d, s%d, 8" % (sT0, sW), S(sW), S(sT0))
    S_(e, "s_add_u32 s%d, s%d, %d" % (sT0, sT0, L_ST), S(sT0), S(sT0))
    e.valu("v_lshl_add_u32 v%d, v%d, 3, s%d" % (vX0, vX0, sT0), V(vX0) + S(sT0), V(vX0))
    for b in range(2):
        g0 = STG[b]
        e.valu("v_cndmask_b32 v%d, v%d, v%d, %s" % (g0, g0, g0 + 1, sr(m1, 2)), V(g0, 2) + S(m1, 2), V(g0))
        e.valu("v_cndmask_b32 v%d, v%d, v%d, %s" % (g0 + 2, g0 + 2, g0 + 3, sr(m1, 2)), V(g0 + 2, 2) + S(m1, 2), V(g0 + 2))
        e.valu("v_cndmask_b32 v%d, v%d, v%d, %s" % (STS[b] + 1, g0, g0 + 2, sr(m2, 2)), V(g0) + V(g0 + 2) + S(m2, 2), V(STS[b] + 1))
    S_(e, "s_mov_b64 exec, %s" % sr(md, 2), S(md, 2), ["exec"])
    for b in range(2):
        G.misc["cs_tok"] = e.ins("ds_write_b64 v%d, %s offset:%d" % (vX0, vr(STS[b], 2), b * 128), "dswrite", V(vX0) + V(STS[b], 2), [])
    S_(e, "s_mov_b64 exec, -1", [], ["exec"])

def stats_items():
    L = []
    g0m, g1m = sMK, sMK + 2
    L.append(VA("v_and_b32 v%d, 15, v0" % vX0, V(0), V(vX0)))
    def f(G):
        S_(G.e, "s_lshl_b32 s%d, s%d, 8" % (sT1, sTG), S(sTG), S(sT1))
        S_(G.e, "s_add_u32 s%d, s%d, %d" % (sT1, sT1, L_ST), S(sT1), S(sT1))
        G.e.valu("v_lshl_add_u32 v%d, v%d, 3, s%d" % (vX0, vX0, sT1), V(vX0) + S(sT1), V(vX0))
    L.append((4, f))
    for b in range(2):
        L.append(OT(lambda G, b=b: G.e.ins("ds_read2_b64 %s, v%d offset0:%d offset1:%d" % (vr(STG[b], 4), vX0, b * 16, 128 + b * 16), "dsread", V(vX0), V(STG[b], 4))))
    L.append(OT(lambda G: (set_mask(G.e, g0m, 0x0000FFFF, 0), set_mask(G.e, g1m, 0xFFFF0000, 0))))
    L.append(("delay", 3))
    for b in range(2):
        t = STG[b]; u = STS[b]
        k0, k1, s = vK + 3 * b, vK + 3 * b + 1, vK + 3 * b + 2
        bc = vBC + 2 * b
        L.append(VA("v_add_f32 v%d, v%d, v%d" % (t, t, t + 2), V(t) + V(t + 2), V(t)))
        L.append(VA("v_add_f32 v%d, v%d, v%d" % (t + 1, t + 1, t + 3), V(t + 1) + V(t + 3), V(t + 1)))
        L.append(VA("v_mul_f32 v%d, 0x%x, v%d" % (t, f2u(-1.0 / 576), t), V(t), V(t)))
        L.append(VA("v_mul_f32 v%d, 0x%x, v%d" % (t + 1, f2u(1.0 / 576), t + 1), V(t + 1), V(t + 1)))
        L.append(VA("v_fma_f32 v%d, -v%d, v%d, v%d" % (t + 1, t, t, t + 1), V(t, 2), V(t + 1)))
        L.append(VA("v_max_f32 v%d, 0, v%d" % (t + 1, t + 1), V(t + 1), V(t + 1)))
        L.append(VA("v_add_f32 v%d, 0x%x, v%d" % (t + 1, f2u(1e-5), t + 1), V(t + 1), V(t + 1)))
        L.append(TR("v_sqrt_f32 v%d, v%d" % (s, t + 1), V(t + 1), V(s)))
        L.append(TR("v_rsq_f32 v%d, v%d" % (t + 2, t + 1), V(t + 1), V(t + 2)))
        L.append(VA("v_cvt_pk_bf16_f32 v%d, v%d, v%d" % (u, t, t), V(t), V(u)))
        L.append(VA("v_mul_f32 v%d, 0x%x, v%d" % (k0, f2u(C0), t + 2), V(t + 2), V(k0)))
        L.append(VA("v_mul_f32 v%d, v%d, v%d" % (t + 3, t + 2, t + 2), V(t + 2), V(t + 3)))
        L.append(VA("v_lshlrev_b32 v%d, 16, v%d" % (u + 1, u), V(u), V(u + 1)))
        L.append(VA("v_mul_f32 v%d, v%d, v%d" % (t + 3, t + 3, t + 2), V(t + 3) + V(t + 2), V(t + 3)))
        L.append(VA("v_sub_f32 v%d, v%d, v%d" % (u + 1, t, u + 1), V(t) + V(u + 1), V(u + 1)))
        L.append(VA("v_mul_f32 v%d, 0x%x, v%d" % (k1, f2u(C1), t + 3), V(t + 3), V(k1)))
        L.append(VA("v_cvt_pk_bf16_f32 v%d, v%d, v%d" % (u + 2, u + 1, s), V(u + 1) + V(s), V(u + 2)))
        L.append(VA("v_and_b32 v%d, 0xffff0000, v%d" % (u + 3, u + 2), V(u + 2), V(u + 3)))
        L.append(VA("v_sub_f32 v%d, v%d, v%d" % (u + 3, s, u + 3), V(s) + V(u + 3), V(u + 3)))
        L.append(VA("v_cvt_pk_bf16_f32 v%d, 0, v%d" % (u + 3, u + 3), V(u + 3), V(u + 3)))
        L.append(VA("v_cndmask_b32 v%d, 0, v%d, %s" % (bc, u, sr(g0m, 2)), V(u) + S(g0m, 2), V(bc)))
        L.append(VA("v_cndmask_b32 v%d, 0, v%d, %s" % (bc + 1, u + 3, sr(g1m, 2)), V(u + 3) + S(g1m, 2), V(bc + 1)))
        L.append(VA("v_cndmask_b32 v%d, v%d, v%d, %s" % (bc + 1, bc + 1, u + 2, sr(g0m, 2)), V(bc + 1) + V(u + 2) + S(g0m, 2), V(bc + 1)))
    return L

def cs_write(G, tile):
    e = G.e
    e.valu("v_and_b32 v%d, 15, v0" % vX1, V(0), V(vX1))
    e.valu("v_lshl_add_u32 v%d, v%d, 4, s%d" % (vX1, vX1, sCSW), V(vX1) + S(sCSW), V(vX1))
    G.misc["cs_tok"] = e.ins("ds_write_b32 v%d, v%d offset:%d" % (vX1, vCS, (tile & 1) * 512), "dswrite", V(vX1) + V(vCS), [])

def epilogue_items(tile, hdst, dacc=None):
    acc = ACC[tile % 2]
    if dacc is None: dacc = acc
    T = vT
    A0, A2 = vAC
    L = []
    L.append(VA("v_and_b32 v%d, 15, v0" % A2, V(0), V(A2)))
    L.append(VA("v_lshl_add_u32 v%d, v%d, 4, s%d" % (A0, A2, sCSR), V(A2) + S(sCSR), V(A0)))
    L.append(OT(lambda G: G.e.ins("ds_read_b64 %s, v%d offset:%d" % (vr(T, 2), A0, (tile & 1) * 512), "dsread", V(A0), V(T, 2))))
    L.append(VA("v_xor_b32 v%d, 8, v%d" % (A0, A0), V(A0), V(A0)))
    L.append(OT(lambda G: G.e.ins("ds_read_b64 %s, v%d offset:%d" % (vr(T + 2, 2), A0, (tile & 1) * 512), "dsread", V(A0), V(T + 2, 2))))
    L.append(VA("v_lshl_add_u32 v%d, v%d, 1, s%d" % (A2, A2, sB1A), V(A2) + S(sB1A), V(A2)))
    L.append(OT(lambda G: G.e.ins("ds_read_u16 v%d, v%d offset:%d" % (A0, A2, 0 if OPT["prot"] else tile * 128), "dsread", V(A2), V(A0))))
    L.append(VA("v_xor_b32 v%d, 32, v%d" % (A2, A2), V(A2), V(A2)))
    L.append(OT(lambda G: G.e.ins("ds_read_u16 v%d, v%d offset:%d" % (A2, A2, 0 if OPT["prot"] else tile * 128), "dsread", V(A2), V(A2))))
    if OPT["prot"]:
        def adv(G):
            e = G.e
            S_(e, "s_add_u32 s%d, s%d, 128" % (sB1A, sB1A), S(sB1A), S(sB1A))
            S_(e, "s_lshl_b32 s%d, s%d, 7" % (sT1, sNP), S(sNP), S(sT1))
            S_(e, "s_sub_u32 s%d, s%d, s%d" % (sT1, sB1A, sT1), S(sB1A) + S(sT1), S(sT1))
            S_(e, "s_cmp_ge_u32 s%d, s%d" % (sB1A, sB1E), S(sB1A) + S(sB1E), ["scc"])
            S_(e, "s_cselect_b32 s%d, s%d, s%d" % (sB1A, sT1, sB1A), S(sB1A) + S(sT1), S(sB1A))
        L.append(OT(adv))
    L.append(("delay", 4))
    L.append(VA("v_add_f32 v%d, v%d, v%d" % (T, T, T + 1), V(T, 2), V(T)))
    L.append(VA("v_add_f32 v%d, v%d, v%d" % (T + 2, T + 2, T + 3), V(T + 2, 2), V(T + 2)))
    for a in range(2):
        L.append(VA("v_lshlrev_b32 v%d, 16, v%d" % (vAC[a], vAC[a]), V(vAC[a]), V(vAC[a])))
    for a in range(2):
        L.append(VA("v_cvt_pk_bf16_f32 v%d, v%d, v%d" % (vAC[a] + 1, T + 2 * a, vAC[a]), V(T + 2 * a) + V(vAC[a]), V(vAC[a] + 1)))
    for a in range(2):
        L.append(VA("v_lshlrev_b32 v%d, 16, v%d" % (T + 2 * a + 1, vAC[a] + 1), V(vAC[a] + 1), V(T + 2 * a + 1)))
    for a in range(2):
        L.append(VA("v_sub_f32 v%d, v%d, v%d" % (T + 2 * a, T + 2 * a, T + 2 * a + 1), V(T + 2 * a, 2), V(T + 2 * a)))
    for a in range(2):
        L.append(VA("v_cvt_pk_bf16_f32 v%d, v%d, v%d" % (vAC[a], T + 2 * a + 1, T + 2 * a), V(T + 2 * a, 2), V(vAC[a])))
    L.append(("delay", 1))
    for a in range(2):
        for b in range(2):
            L.append((4, lambda G, a=a, b=b: G.e.mfma(dacc + 8 * a + 4 * b, vAC[a], vBC + 2 * b, acc + 8 * a + 4 * b, k=16)))
    L.append(OT(lambda G: G.misc.__setitem__("corr_done", tile)))
    L.append(("delay", 2))
    for b in range(2):
        k0, k1, s = vK + 3 * b, vK + 3 * b + 1, vK + 3 * b + 2
        for a in range(2):
            q = [dacc + 8 * a + 4 * b + i for i in range(4)]
            if not OPT["nogelu"]:
                for i in range(4): L.append(VA("v_mul_f32 v%d, v%d, v%d" % (T + i, q[i], q[i]), V(q[i]), V(T + i)))
                for i in range(4): L.append(VA("v_fma_f32 v%d, v%d, v%d, v%d" % (T + i, T + i, k1, k0), V(T + i) + V(k1) + V(k0), V(T + i)))
                for i in range(4): L.append(VA("v_mul_f32 v%d, v%d, v%d" % (T + i, q[i], T + i), V(q[i]) + V(T + i), V(T + i)))
                for i in range(4): L.append(TR("v_exp_f32 v%d, v%d" % (T + i, T + i), V(T + i), V(T + i)))
                for i in range(4): L.append(VA("v_fma_f32 v%d, v%d, v%d, v%d" % (T + i, T + i, s, s), V(T + i) + V(s), V(T + i)))
                for i in range(4): L.append(TR("v_rcp_f32 v%d, v%d" % (T + i, T + i), V(T + i), V(T + i)))
                for i in range(4): L.append(VA("v_mul_f32 v%d, v%d, v%d" % (q[i], q[i], T + i), V(q[i]) + V(T + i), V(q[i])))
            for i in range(2):
                d = hdst + 4 * b + 2 * a + i
                L.append(VA("v_cvt_pk_bf16_f32 v%d, v%d, v%d" % (d, q[2 * i], q[2 * i + 1]), V(q[2 * i]) + V(q[2 * i + 1]), V(d)))
        def sw(G, b=b):
            e = G.e
            lab = G.newlabel("sw")
            e.raw("s_cbranch_vccz %s" % lab); e.pos += 1
            p0 = e.pos
            for i in range(2):
                r0, r1 = hdst + 4 * b + i, hdst + 4 * b + 2 + i
                e.valu("v_swap_b32 v%d, v%d" % (r0, r1), V(r0) + V(r1), V(r0) + V(r1))
            e.pos = p0
            for r in V(hdst + 4 * b, 4): e.lastw[r] = ("valu", p0 - 1, None)
            e.label(lab)
        L.append((4, sw))
        def st(G, b=b):
            e = G.e
            S_(e, "s_add_u32 s%d, s%d, %d" % (sT1, sHB, tile * 16384 + b * 1024), S(sHB), S(sT1))
            if OPT["nost"] == 1: tok = 0
            else:
              tok = e.ins("buffer_store_dwordx4 %s, v%d, %s, s%d offen%s" % (vr(hdst + 4 * b, 4), vL16, sr(SWS, 4), sT1, "" if OPT["nost"] == 2 else " sc1"), "vstore",
                        V(hdst + 4 * b, 4) + V(vL16) + S(SWS, 4) + S(sT1), [], widestore=V(hdst + 4 * b, 4))
            if OPT["nost"] == 3: tok = 0
            if b == 1:
                G.pub_pending.append([tile, tok, G.misc["cur_stage"]])
                G.misc["h_done"] = tile
        if OPT["stm"]:
            if b == 0: st0 = st
            else:
                def both(G, st0=st0, st=st):
                    st0(G); st(G)
                    G.misc["quiet"] = G.misc.get("mcount", 0) + OPT["stq"]; G.misc["quiet_k"] = OPT["stk"]
                L.append(OT(both))
        else: L.append(OT(st))
    return L

def poll(G, srdreg, saddr, tmp, need, kind):
    pr = sMK + 6; pr2 = sMK + 4
    def load_txt():
        if kind == "flag":
            return ["v_and_b32 v%d, 3, v0" % tmp, "v_lshlrev_b32 v%d, 3, v%d" % (tmp, tmp),
                    "buffer_load_dwordx2 %s, v%d, %s, s%d offen sc1" % (vr(tmp, 2), tmp, sr(srdreg, 4), saddr)]
        return ["buffer_load_dwordx2 %s, off, %s, 0 sc1" % (vr(tmp, 2), sr(srdreg, 4))]
    def cond_txt():
        if kind == "flag":
            return ["s_add_u32 s%d, s%d, %d" % (sT0, sE, need),
                    "v_subrev_u32 v%d, s%d, v%d" % (tmp, sT0, tmp),
                    "v_cmp_ne_u32 %s, s%d, v%d" % (sr(pr2, 2), sE + 1, tmp + 1),
                    "v_cmp_lt_u32 %s, %d, v%d" % (sr(pr, 2), 15 - need, tmp),
                    "s_lshl_b32 s%d, 1, s%d" % (sT0, sNQ if saddr == sF1R else sKQ),
                    "s_andn2_b32 s%d, 15, s%d" % (sT0, sT0),
                    "s_nop 0",
                    "s_or_b32 s%d, s%d, s%d" % (pr, pr, pr2),
                    "s_and_b32 s%d, s%d, s%d" % (pr, pr, sT0)]
        return ["v_readfirstlane_b32 s%d, v%d" % (sE, tmp), "v_readfirstlane_b32 s%d, v%d" % (sE + 1, tmp + 1),
                "s_nop 2", "s_cmp_eq_u32 s%d, 0" % (sE + 1)]
    st = {}
    def issue(G):
        if kind == "dbg":
            for l in load_txt(): G.e.raw(l); G.e.pos += 1
        else: dw_block(G, load_txt(), V(tmp, 2))
        G.misc["pt%d" % tmp] = G.e.vmseq
    def check(G):
        e = G.e
        if OPT["nopoll"] and kind == "flag": return
        lok = G.newlabel("ok"); lsp = G.newlabel("sp")
        vt = G.misc["pt%d" % tmp]
        n = sum(1 for (q, r) in e.vm if q > vt)
        L = ["s_waitcnt vmcnt(%d)" % n] + cond_txt() + ["s_cbranch_scc0 %s" % lok, "s_mov_b32 s%d, %d" % (sSPIN, OPT["spin"]), lsp + ":", "s_sleep 1"]
        L += load_txt() + ["s_waitcnt vmcnt(0)"] + cond_txt() + ["s_cbranch_scc0 %s" % lok,
              "s_sub_u32 s%d, s%d, 1" % (sSPIN, sSPIN), "s_cmp_lg_u32 s%d, 0" % sSPIN, "s_cbranch_scc1 %s" % lsp, lok + ":", "s_nop 1"]
        if kind == "dbg":
            for l in L:
                if l.endswith(":"): e.label(l[:-1])
                else: e.raw(l)
        else: dw_block(G, L, V(tmp, 2))
    return issue, check

def hload_items(typ, level):
    ko, hreg = korder(typ)
    keep = [(0, 2), (0, 3)] if typ == "A" else [(0, 3), (0, 4)]
    L = []
    for k in ko:
        if k[1] == level and k not in keep:
            for b in range(2):
              def f(G, k=k, b=b):
                e = G.e
                r = hreg[k]
                assert G.misc.get("xdead", -1) >= (r + 7 - XF) // 16, ("x regs still live", k, r, G.misc.get("xdead"))
                if k in (ko[16], ko[17]):
                    assert G.misc.get("h_done", -1) == (3 if typ == "A" else 4), "last epilogue not finished"
                if OPT["hdbg"] == 1: S_(e, "s_add_u32 s%d, s%d, %d" % (sT1, sHL, 0), S(sHL + k[0]), S(sT1))
                else: S_(e, "s_add_u32 s%d, s%d, %d" % (sT1, sHL + k[0], k[1] * 16384), S(sHL + k[0]), S(sT1))
                if OPT["hdbg"] != 2:
                  e.ins("buffer_load_dwordx4 %s, v%d, %s, s%d offen offset:%d%s" % (vr(r + 4 * b, 4), vL16, sr(SWS, 4), sT1, b * 1024, "" if OPT["hdbg"] == 3 else " sc1"), "vload",
                      V(vL16) + S(SWS, 4) + S(sT1), V(r + 4 * b, 4))
                G.misc["hl"] = G.misc.get("hl", frozenset()) | {r + 4 * b}
              L.append(OT(f))
    return L

def publish_pre(G, typ, s):
    npair = 4 if typ == "A" else 5
    while G.pub_pending and (s - G.pub_pending[0][2] >= OPT["pubd"] or (G.pub_pending[0][0] == npair - 1 and s - G.pub_pending[0][2] >= 1)):
        tile, tok, _ = G.pub_pending.pop(0)
        G.e.wait_vm_token(tok)
        G.misc["pub_ready"] = tile

def publish(G, typ, s, tmp):
    npair = 4 if typ == "A" else 5
    tile = G.misc.get("pub_ready", -1)
    if tile > G.published:
        flag_store(G, SWS, sF1R, sNQ, 15 if tile == npair - 1 else tile + 1, tmp)
        if OPT["th"]:
            G.e.valu("v_lshlrev_b32 v%d, 7, v0" % tmp, V(0), V(tmp))
            S_(G.e, "s_add_u32 s%d, s%d, %d" % (sT0, sHB, tile * 16384), S(sHB), S(sT0))
            touch(G, tmp, SWS, sT0, 0xffff, 0)
        G.published = tile

def vrun(G, budget):
    while G.q and budget > 0:
        it = G.q.pop(0)
        if it[0] == "delay": continue
        it[1](G)
        budget -= max(it[0], 1)

def qcost(G):
    return sum(it[0] for it in G.q if it[0] != "delay")

def run_stages(G, typ, stages, seq, hgs, s_from, s_to):
    e = G.e
    npair = 4 if typ == "A" else 5
    nP1 = 9 + 3 * (npair - 1)
    ko, hreg = korder(typ)
    late = [ACC[(npair - 1) % 2] + 4 * i for i in range(4)] + [vBC, 96]
    keepregs = [hreg[(0, l)] + 4 * b for l in (npair - 2, npair - 1) for b in range(2)]
    for s in range(s_from, s_to):
        st = stages[s]
        G.misc["cur_stage"] = s
        e.comment("==== stage %d %s" % (s, {k: v for k, v in st.items() if k != "units"}))
        if OPT["ststamp"] and s >= OPT["ststamp"]: G.stamp(True)
        isx = st["kind"] == "X"
        hard = isx or s in (9, nP1, nP1 + 9) or not OPT["split"]
        p1 = st["kind"] in ("X", "W")
        stmp = vSY1 if p1 else vA + 2
        def is_soft(k):
            if k >= len(stages): return False
            if stages[k]["kind"] == "X": return bool((OPT["soft"] >> k) & 1)
            if OPT["softw"] and not (k in G.top_hooks) and k not in (9, nP1, nP1 + 9):
                if stages[k]["kind"] == "W": return stages[k]["j"] == 2 and OPT["softw"] & 1
                if stages[k]["kind"] == "PB": return OPT["softw"] & 2
            return False
        soft = G.misc.get("soft_next") == s
        ahead = 1
        nx = s + 1
        if not soft and is_soft(s + 1):
            ahead = 2; G.misc["soft_next"] = s + 1
        if OPT["tr0"] <= s < OPT["tr1"]: G.trace(stmp)
        vb = OPT["vb"] and s >= OPT["vb0"]
        vbn = OPT["vb"] and s + 1 >= OPT["vb0"]
        hq_snapshot = len(G.misc.get("hq", []))
        for h in G.top_hooks.pop(s, []): h(G)
        if vb:
            toks = []
            if s + 1 < len(stages):
                for ui in range(len(stages[s + 1]["units"])):
                    assert (s + 1, ui) in G.unit_tok, ("dma late", s, ui)
                    toks.append(G.unit_tok[(s + 1, ui)])
            npr = 4 if typ == "A" else 5
            while G.pub_pending and (s - G.pub_pending[0][2] >= OPT["pubd"] or (G.pub_pending[0][0] == npr - 1 and s - G.pub_pending[0][2] >= 1)):
                tile, tok, _ = G.pub_pending.pop(0)
                toks.append(tok); G.misc["pub_ready"] = tile
            if st["kind"] == "PA":
                need = set(m[2] for i, h in enumerate(hgs) if h["stage"] == s for m in h["mf"]) - set(keepregs)
                for r in need:
                    assert r in G.misc.get("hl", ()), ("h load late", typ, s, r)
                    for (q, regs) in e.vm:
                        if "v%d" % r in regs: toks.append(q)
            T = max(toks) if toks else 0
            n1 = sum(1 for (q, r) in e.vm if q > T)
            has_wait = any(q <= T for (q, r) in e.vm)
            e.vm = [(q, r) for (q, r) in e.vm if q > T]
            l1 = G.newlabel("v1"); l2 = G.newlabel("v2")
            e.raw("s_cmp_eq_u32 s%d, 0" % sG); e.raw("s_cbranch_scc0 %s" % l1); e.pos += 2
            save = e.out; e.out = []
            v0 = e.vmseq
            dq = list(G.misc.get("dmaq", [])); hq = list(G.misc.get("hq", []))
            nd = 0; nh = 0
            def must(it): return False
            while (dq and nd < OPT["vbd"]) or (hq and nh < min(OPT["vbh"], hq_snapshot)):
                if dq and nd < OPT["vbd"]:
                    run_dma_item(G, dq.pop(0)); nd += 1
                if hq and nh < min(OPT["vbh"], hq_snapshot):
                    hq.pop(0)[1](G); nh += 1
            if s + 2 < len(stages):
                while any((s + 2, ui) not in G.unit_tok for ui in range(len(stages[s + 2]["units"]))):
                    assert dq, ("dma not allocated in time", typ, s)
                    run_dma_item(G, dq.pop(0))
            if s + 1 < len(stages) and stages[s + 1]["kind"] == "PA":
                need = set(m[2] for i, h in enumerate(hgs) if h["stage"] == s + 1 for m in h["mf"]) - set(keepregs)
                while any(r not in G.misc.get("hl", ()) for r in need):
                    assert hq and nh < hq_snapshot, ("h load cannot be issued in time", typ, s)
                    hq.pop(0)[1](G); nh += 1
            G.misc["dmaq"] = dq; G.misc["hq"] = hq
            blk = e.out; e.out = save
            assert not any("s_waitcnt" in l for l in blk), blk
            nb = e.vmseq - v0
            e.out += blk
            if has_wait: e.raw("s_waitcnt vmcnt(%d)" % (n1 + nb))
            e.raw("s_barrier"); e.raw("s_branch %s" % l2)
            e.label(l1)
            if has_wait: e.raw("s_waitcnt vmcnt(%d)" % n1)
            e.raw("s_barrier")
            e.out += blk
            e.label(l2)
        for sa in range(s + 1, min(s + ahead, len(stages) - 1) + 1):
            if vb or soft: break
            for ui in range(len(stages[sa]["units"])):
                while (sa, ui) not in G.unit_tok:
                    assert G.misc["dmaq"], ("dma not allocated in time", s, sa, ui)
                    run_dma_item(G, G.misc["dmaq"].pop(0))
            e.wait_vm_token(max(G.unit_tok[(sa, ui)] for ui in range(len(stages[sa]["units"]))))
        G.misc["cert_at"] = dict(G.misc.get("cert_at", {})); G.misc["cert_at"][s] = s + ahead
        if soft:
            assert s not in G.top_hooks
            G.q = G.post_items.pop(("pre", s), []) + G.q + G.post_items.pop(s, [])
        def after_sync(G, k):
            while G.misc.get("synced", -1) < k:
                kk = G.misc.get("synced", -1) + 1
                G.misc["synced"] = kk
                G.certified = G.misc["cert_at"][kk]
                if kk > 0:
                    for ui in range(len(stages[kk - 1]["units"])): G.free.append(G.unit_pos[(kk - 1, ui)])
                G.q = G.post_items.pop(("pre", kk), []) + G.q + G.post_items.pop(kk, [])
            if not OPT["phase1_only"]:
                publish(G, typ, s, stmp - 1)
            lim = s + (OPT["xla"] if isx else OPT["wla"])
            if lim >= nP1: lim = max(min(lim, s + OPT["pla"]), nP1 - 1)
            dm = try_alloc(G, typ, stages, seq, lim)
            if isx and not OPT["xsp"]: G.q = dm + G.q
            else: G.misc["dmaq"] = G.misc.get("dmaq", []) + dm
        pend_check = False
        if not OPT["phase1_only"] and not vb and not soft: publish_pre(G, typ, s)
        if soft:
            if OPT["tr0"] <= s < OPT["tr1"]: G.trace(stmp)
        elif hard:
            if not vb: e.barrier()
            if OPT["tr0"] <= s < OPT["tr1"]: G.trace(stmp)
            after_sync(G, s)
        else:
            arrive(G, s, stmp)
            if G.misc.get("synced", -1) < s - 1:
                if OPT["kchk"] <= 1: sync_issue(G, stmp)
                pend_check = True
            else:
                after_sync(G, s - 1)
        idx = [i for i, h in enumerate(hgs) if h["stage"] == s]
        def gap():
            G.misc["mcount"] = G.misc.get("mcount", 0) + 1
            G.fill()
            dq = G.misc.get("dmaq")
            if vbn:
                emit_reads(G, OPT["rdfast"] if not isx else 2)
                return
            quiet = G.misc["mcount"] < G.misc.get("quiet", 0) and G.misc.get("quiet_k", 0) <= 0
            if dq:
                it = dq[0]
                if it[2] and OPT["micro"]:
                    it[2][0](G)
                    G.misc["dmaq"] = [(it[0], it[1], it[2][1:])] + list(dq[1:])
                elif G.misc.get("gapn", 0) + 1 >= (OPT["xgap"] if isx else (OPT["dmagap"] if p1 else OPT["pgap"])) and (G.misc.get("rdq") or isx) and not quiet:
                    G.misc["quiet_k"] = G.misc.get("quiet_k", 0) - 1
                    G.misc["dma_filler"] = lambda: emit_reads(G, 1)
                    G.misc["dmaq"] = list(dq[1:])
                    run_dma_item(G, it)
                    if isx: emit_reads(G, 1)
                    G.misc["gapn"] = 0
                    G.misc["hgapn"] = G.misc.get("hgapn", 0) + 1
                    return
            emit_reads(G, OPT["rdfast"] if not isx else 2)
            G.misc["hgapn"] = G.misc.get("hgapn", 0) + 1
            if G.misc.get("hq") and G.misc["hgapn"] >= OPT["hgap"] and not quiet:
                G.misc["quiet_k"] = G.misc.get("quiet_k", 0) - 1
                G.misc["hq"] = list(G.misc["hq"])
                G.misc["hq"].pop(0)[1](G)
                G.misc["hgapn"] = 0
                return
            G.misc["gapn"] = G.misc.get("gapn", 0) + 1

        for hn, hi in enumerate(idx):
            h = hgs[hi]
            if vbn and OPT["vbprio"]:
                if G.misc.get("prio") != "vb":
                    lp = G.newlabel("pr")
                    e.raw("s_setprio 0"); e.raw("s_cmp_eq_u32 s%d, 0" % sG); e.raw("s_cbranch_scc0 %s" % lp); e.raw("s_setprio 1"); e.label(lp); e.pos += 3
                    G.misc["prio"] = "vb"
            elif OPT["ladder"] and (not isx or OPT["xlad"]):
                pr = 3 - (hn * 4) // len(idx)
                if pr != G.misc.get("prio"):
                    e.raw("s_setprio %d" % pr); e.pos += 1
                    G.misc["prio"] = pr
            if pend_check and hn == OPT["kchk"] - 1 and hn > 0: sync_issue(G, stmp)
            if pend_check and hn == OPT["kchk"]:
                sg = ("sg", s) in G.post_items
                sync_check(G, s - 1, stmp, sg)
                after_sync(G, s - 1)
                if sg: G.q = G.q + G.post_items.pop(("sg", s))
                for hk in G.top_hooks.pop(("v", s), []): hk(G)
            issue_hg_reads(G, hgs, hi + 1)
            buf = G.hgbuf[hi]
            while any((k == "t" and buf <= d < buf + 8) or (k == "x" and any(d == m[2] for m in h["mf"])) for (k, d, r, u, o) in G.misc.get("rdq", [])):
                emit_reads(G, 1)
            for n, (acc, ao, breg, first) in enumerate(h["mf"]):
                if first and st["kind"] == "W":
                    while st["p"] >= 2 and G.misc.get("h_done", -1) < st["p"] - 2:
                        G.credit = 100; G.fill()
                if st["kind"] == "PA" and st["j"] == 0 and first:
                    while G.misc.get("h_done", -1) < npair - 2:
                        G.credit = 100; G.fill()
                    if acc in late:
                        while G.misc.get("corr_done", -1) < npair - 1:
                            G.credit = 100; G.fill()
                if st["kind"] == "PA" and breg in (hreg[(0, npair - 1)], hreg[(0, npair - 1)] + 4):
                    while G.misc.get("h_done", -1) < npair - 1:
                        G.credit = 100; G.fill()
                if st["kind"] == "PA" and breg not in keepregs:
                    while breg not in G.misc.get("hl", ()):
                        assert G.misc.get("hq"), ("h load not scheduled before use", s, breg)
                        G.misc["hq"] = list(G.misc["hq"]); G.misc["hq"].pop(0)[1](G)
                if n == 0: e._autowait(V(buf, 8))
                e.mfma(acc, buf + ao, breg, None if first else acc)
                if n == 0:
                    G.hgbuf.pop(hi - 1, None)
                    issue_hg_reads(G, hgs, hi + 3)
                gap()
            if "p1" in h:
                p, c, a = h["p1"]
                if not OPT["nocs"] and a == 0:
                    e.mfma(vCS, vONES, buf, None if c == 0 else vCS)
                    gap()
                if isx:
                    for b in range(2):
                        if a == 0: e.mfma(STG[b], X(c, 0, b), X(c, 0, b), None if c == 0 else STG[b])
                        else: e.mfma(STS[b], vONES, X(c, 1, b), None if c == 0 else STS[b])
                        gap()
                if p == npair - 1 and a == 1: G.misc["xdead"] = c
                if h["last"]:
                    if p == 0:
                        G.drain()
                        stats_pre(G)
                    cs_write(G, p)
                    G.misc["deadline"] = (G.misc["mcount"] + (81 if not OPT["nocs"] else 72)) if p < npair - 1 else None
                    def th(G): G.e.wait_ds_token(G.misc["cs_tok"])
                    if s + 1 in (9, nP1) or not OPT["split"]:
                        G.top_hooks.setdefault(s + 1, []).append(th)
                    items = []
                    if p == 0: items += stats_items()
                    if p == npair - 1 and not OPT["phase1_only"]:
                        items += epilogue_items(p, hreg[(0, p)], dacc=hreg[ko[16]])
                        assert hreg[ko[17]] == hreg[ko[16]] + 8
                    else:
                        items += epilogue_items(p, HOWN)
                    if s + 1 in (9, nP1) or not OPT["split"]: G.post_items.setdefault(s + 1, []).extend(items)
                    else: G.post_items.setdefault(("sg", s + 1), []).extend(items)
            if h.get("hand") is not None:
                if h["hand"] == 0: hand_setup(G)
                G.q = G.q + [("delay", 3)] + hand_write_items(typ, h["hand"])
            if h.get("lastA"): end_passA(G, typ, stages, s)

vL4 = 23

def hand_setup(G):
    e = G.e
    aw, ar = vA, vA + 3
    e.valu("v_add_u32 v%d, s%d, v%d" % (aw, sWB, vL16), S(sWB) + V(vL16), V(aw))
    e.valu("v_xor_b32 v%d, 0x1000, v%d" % (ar, aw), V(aw), V(ar))
    G.base[aw] = 0; G.base[ar] = 0

def hand_write_items(typ, ts):
    quads = p2_quads(typ)
    aw = vA
    L = []
    q0 = quads[(ts, 1, 0)]
    for b in range(2):
        q = quads[(ts, 1, b)]
        for k in range(2):
            d = q0 + 2 * b + k
            L.append(VA("v_cvt_pk_bf16_f32 v%d, v%d, v%d" % (d, q + 2 * k, q + 2 * k + 1), V(q + 2 * k, 2), V(d)))
    def f(G):
        o = G.off(aw, G.unit_pos[("HAND", ts)] * UNIT)
        G.misc["cs_tok"] = G.e.ins("ds_write_b128 v%d, %s offset:%d" % (aw, vr(q0, 4), o), "dswrite", V(aw) + V(q0, 4), [])
    L.append(OT(f))
    return L

def end_passA(G, typ, stages, s):
    e = G.e
    G.drain()
    quads = p2_quads(typ)
    nts = 4 if typ == "A" else 3
    ar = vA + 3
    def th(G): G.e.wait_ds_token(G.misc["cs_tok"])
    G.top_hooks.setdefault(s + 1, []).append(th)
    L = []
    rbuf = [vT, vK, quads[(2, 1, 0)], quads[(2, 1, 1)]]
    seq = [(ts, b) for ts in range(nts) for b in range(2)]
    def rd(ts, r):
        def f(G):
            o = G.off(ar, G.unit_pos[("HAND", ts)] * UNIT)
            G.e.ins("ds_read_b128 %s, v%d offset:%d" % (vr(r, 4), ar, o), "dsread", V(ar), V(r, 4))
        return OT(f)
    for i in range(nts): L.append(rd(i, rbuf[i]))
    L.append(VA("v_lshlrev_b32 v%d, 2, v0" % vL4, V(0), V(vL4)))
    L.append(("delay", 2))
    t0, t1 = 20, 21
    for i, (ts, b) in enumerate(seq):
        q = quads[(ts, 0, b)]; r = rbuf[ts]
        q0 = quads[(ts, 0, 0)]; q1 = quads[(ts, 0, 1)]
        for k in range(2):
            d = r + 2 * b + k
            L.append(VA("v_lshlrev_b32 v%d, 16, v%d" % (t0, d), V(d), V(t0)))
            L.append(VA("v_and_b32 v%d, 0xffff0000, v%d" % (t1, d), V(d), V(t1)))
            L.append(VA("v_add_f32 v%d, v%d, v%d" % (q + 2 * k, q + 2 * k, t0), V(q + 2 * k) + V(t0), V(q + 2 * k)))
            L.append(VA("v_add_f32 v%d, v%d, v%d" % (q + 2 * k + 1, q + 2 * k + 1, t1), V(q + 2 * k + 1) + V(t1), V(q + 2 * k + 1)))
        for k in range(2):
            d = q0 + 2 * b + k
            L.append(VA("v_cvt_pk_bf16_f32 v%d, v%d, v%d" % (d, q + 2 * k, q + 2 * k + 1), V(q + 2 * k, 2), V(d)))
        if b == 1:
            L.append(VA("v_bitop3_b32 v%d, v%d, v%d, v%d bitop3:0x96" % (q1, q0, q0 + 1, q0 + 2), V(q0, 3), V(q1)))
            L.append(VA("v_bitop3_b32 v%d, v%d, v%d, s%d bitop3:0x96" % (q1, q1, q0 + 3, sE), V(q1) + V(q0 + 3) + S(sE), V(q1)))
            def st(G, ts=ts, q0=q0, q1=q1):
                e = G.e
                if ts < 2:
                    S_(e, "s_and_b32 s%d, s%d, 2" % (sT0, sKQ), S(sKQ), S(sT0))
                    S_(e, "s_xor_b32 s%d, s%d, %d" % (sT0, sT0, 2 + ts), S(sT0), S(sT0))
                elif ts == 2: S_(e, "s_xor_b32 s%d, s%d, 1" % (sT0, sKQ), S(sKQ), S(sT0))
                else: S_(e, "s_mov_b32 s%d, 4" % sT0, [], S(sT0))
                S_(e, "s_lshl4_add_u32 s%d, s%d, s%d" % (sT0, sT0, sKQ), S(sT0) + S(sKQ), S(sT0))
                S_(e, "s_lshl_b32 s%d, s%d, 12" % (sT0, sT0), S(sT0), S(sT0))
                S_(e, "s_add_u32 s%d, s%d, s%d" % (sT0, sT0, sPS), S(sT0) + S(sPS), S(sT0))
                e.ins("buffer_store_dwordx4 %s, v%d, %s, s%d offen sc1" % (vr(q0, 4), vL16, sr(SWS, 4), sT0), "vstore",
                      V(q0, 4) + V(vL16) + S(SWS, 4) + S(sT0), [], widestore=V(q0, 4))
                e.ins("buffer_store_dword v%d, v%d, %s, s%d offen offset:1024 sc1" % (q1, vL4, sr(SWS, 4), sT0), "vstore",
                      V(q1) + V(vL4) + S(SWS, 4) + S(sT0), [])
            L.append(OT(st))
    G.post_items.setdefault(("pre", s + 1), []).extend(L)

def final(G, typ, stages):
    e = G.e
    quads = p2_quads(typ)
    G.drain()
    aw, ar = vA, vA + 3
    own = [quads[(0, 1, b)] for b in range(2)]
    give = [quads[(1, 1, b)] for b in range(2)]
    G.trace(22)
    RB = XF
    def loads(n0, cnt, sbase):
        L = []
        for n in range(cnt):
            r = RB + 8 * (n0 + n)
            L.append("buffer_load_dwordx4 %s, v%d, %s, s%d offen sc1" % (vr(r, 4), vL16, sr(SWS, 4), sbase + n))
            L.append("buffer_load_dword v%d, v%d, %s, s%d offen offset:1024 sc1" % (r + 4, vL4, sr(SWS, 4), sbase + n))
        return L
    def verify(n0, cnt):
        L = []
        for n in range(cnt):
            r = RB + 8 * (n0 + n)
            L.append("v_bitop3_b32 v%d, v%d, v%d, v%d bitop3:0x96" % (r + 5, r, r + 1, r + 2))
            L.append("v_bitop3_b32 v%d, v%d, v%d, v%d bitop3:0x96" % (r + 5, r + 5, r + 3, r + 4))
            L.append("v_xor_b32 v%d, s%d, v%d" % (r + 5, sE, r + 5))
            if n > 0: L.append("v_or_b32 v%d, v%d, v%d" % (RB + 8 * n0 + 5, RB + 8 * n0 + 5, r + 5))
        L.append("v_cmp_ne_u32 vcc, 0, v%d" % (RB + 8 * n0 + 5))
        L.append("s_nop 3")
        L.append("s_cmp_lg_u64 vcc, 0")
        return L
    so, sl = sKW, sKW + 4
    S_(e, "s_lshl_b32 s%d, s%d, 16" % (sMK, sKQ), S(sKQ), S(sMK))
    S_(e, "s_add_u32 s%d, s%d, s%d" % (sMK, sMK, sPS), S(sMK) + S(sPS), S(sMK))
    for n in range(3):
        S_(e, "s_add_u32 s%d, s%d, %d" % (sT0, sKQ, n + 1), S(sKQ), S(sT0))
        S_(e, "s_and_b32 s%d, s%d, 3" % (sT0, sT0), S(sT0), S(sT0))
        S_(e, "s_lshl_b32 s%d, s%d, 12" % (sT0, sT0), S(sT0), S(sT0))
        S_(e, "s_add_u32 s%d, s%d, s%d" % (so + n, sT0, sMK), S(sT0) + S(sMK), S(so + n))
    e.nop(max(e._need("vload", [], V(RB, 64), "x"), 0))
    for l in loads(0, 3, so): e.raw(l); e.pos += 1
    if typ == "A":
        for n in range(4):
            S_(e, "s_add_u32 s%d, s%d, %d" % (sl + n, sPS, 4 * 65536 + n * 4096), S(sPS), S(sl + n))
        lab = G.newlabel("nl")
        e.raw("s_cmp_eq_u32 s%d, s%d" % (sTG, sKQ)); e.raw("s_cbranch_scc0 %s" % lab)
        for l in loads(3, 4, sl): e.raw(l)
        e.label(lab)
    for b in range(2):
        o = G.off(aw, G.unit_pos[("HAND2", b)] * UNIT)
        tok = e.ins("ds_write_b128 v%d, %s offset:%d" % (aw, vr(give[b], 4), o), "dswrite", V(aw) + V(give[b], 4), [])
    ba, oa = vT, vT + 1
    e.valu("v_lshrrev_b32 v%d, 4, v0" % (vT + 2), V(0), V(vT + 2))
    S_(e, "s_lshl_b32 s%d, s%d, 5" % (sT0, sG), S(sG), S(sT0))
    S_(e, "s_sub_u32 s%d, s%d, s%d" % (sT1, sT0, sDBB), S(sT0) + S(sDBB), S(sT1))
    S_(e, "s_add_u32 s%d, s%d, %d" % (sT1, sT1, L_B2), S(sT1), S(sT1))
    e.valu("v_lshl_add_u32 v%d, v%d, 3, s%d" % (ba, vT + 2, sT1), V(vT + 2) + S(sT1), V(ba))
    e.valu("v_and_b32 v%d, 15, v0" % oa, V(0), V(oa))
    e.valu("v_mul_u32_u24 v%d, 1152, v%d" % (oa, oa), V(oa), V(oa))
    e.valu("v_lshl_add_u32 v%d, v%d, 3, v%d" % (oa, vT + 2, oa), V(oa) + V(vT + 2), V(oa))
    sOB = sMK + 1
    S_(e, "s_lshl2_add_u32 s%d, s%d, s%d" % (sOB, sM, sTG), S(sM) + S(sTG), S(sOB))
    S_(e, "s_mul_i32 s%d, s%d, %d" % (sOB, sOB, 32 * 1152), S(sOB), S(sOB))
    S_(e, "s_add_u32 s%d, s%d, s%d" % (sOB, sOB, sT0), S(sOB) + S(sT0), S(sOB))
    e.wait_ds_token(tok)
    e.barrier()
    R = AFR
    for b in range(2):
        o = G.off(ar, G.unit_pos[("HAND2", b)] * UNIT)
        e.ins("ds_read_b128 %s, v%d offset:%d" % (vr(R + 4 * b, 4), ar, o), "dsread", V(ar), V(R + 4 * b, 4))
    def finish_tile(acc, col_s, n0, cnt, sbase, init, mid=None):
        bb = R + 8; f = R + 12
        e.valu("v_add_u32 v%d, s%d, v%d" % (bb, col_s, ba), S(col_s) + V(ba), V(bb))
        e.ins("ds_read_b64 %s, v%d" % (vr(bb, 2), bb), "dsread", V(bb), V(bb, 2))
        e.valu("v_lshlrev_b32 v%d, 16, v%d" % (f, bb), V(bb), V(f))
        e.valu("v_and_b32 v%d, 0xffff0000, v%d" % (f + 1, bb), V(bb), V(f + 1))
        e.valu("v_lshlrev_b32 v%d, 16, v%d" % (f + 2, bb + 1), V(bb + 1), V(f + 2))
        e.valu("v_and_b32 v%d, 0xffff0000, v%d" % (f + 3, bb + 1), V(bb + 1), V(f + 3))
        for b in range(2):
            q = acc[b]
            for k in range(4):
                if init:
                    e.valu("v_mov_b32 v%d, v%d" % (q + k, f + k), V(f + k), V(q + k))
                else:
                    e.valu("v_add_f32 v%d, v%d, v%d" % (q + k, q + k, R + 4 * b + k), V(q + k) + V(R + 4 * b + k), V(q + k))
                    e.valu("v_add_f32 v%d, v%d, v%d" % (q + k, q + k, f + k), V(q + k) + V(f + k), V(q + k))
        lok = G.newlabel("fo"); lsp = G.newlabel("fs")
        e.raw("s_waitcnt vmcnt(0)")
        for l in verify(n0, cnt): e.raw(l)
        e.raw("s_cbranch_scc0 %s" % lok)
        if OPT["nopoll"]: e.raw("s_branch %s" % lok)
        e.raw("s_mov_b32 s%d, %d" % (sSPIN, OPT["spin"]))
        e.label(lsp)
        e.raw("s_sleep %d" % OPT["fsleep"])
        for l in loads(n0, cnt, sbase): e.raw(l)
        e.raw("s_waitcnt vmcnt(0)")
        for l in verify(n0, cnt): e.raw(l)
        e.raw("s_cbranch_scc0 %s" % lok)
        e.raw("s_sub_u32 s%d, s%d, 1" % (sSPIN, sSPIN)); e.raw("s_cmp_lg_u32 s%d, 0" % sSPIN); e.raw("s_cbranch_scc1 %s" % lsp)
        e.label(lok)
        e.vm = []
        if not init:
            G.stamp(); G.trace(22)
        for n in range(cnt):
            r = RB + 8 * (n0 + n)
            for b in range(2):
                q = acc[b]
                for k in range(2):
                    d = r + 2 * b + k
                    e.valu("v_lshlrev_b32 v%d, 16, v%d" % (r + 6, d), V(d), V(r + 6))
                    e.valu("v_and_b32 v%d, 0xffff0000, v%d" % (r + 7, d), V(d), V(r + 7))
                    e.valu("v_add_f32 v%d, v%d, v%d" % (q + 2 * k, q + 2 * k, r + 6), V(q + 2 * k) + V(r + 6), V(q + 2 * k))
                    e.valu("v_add_f32 v%d, v%d, v%d" % (q + 2 * k + 1, q + 2 * k + 1, r + 7), V(q + 2 * k + 1) + V(r + 7), V(q + 2 * k + 1))
        if mid: mid()
        S_(e, "s_add_u32 s%d, s%d, s%d" % (sT1, sOB, col_s), S(sOB) + S(col_s), S(sT1))
        for b in range(2):
            q = acc[b]
            e.valu("v_cvt_pk_bf16_f32 v%d, v%d, v%d" % (q, q, q + 1), V(q, 2), V(q))
            e.valu("v_cvt_pk_bf16_f32 v%d, v%d, v%d" % (q + 1, q + 2, q + 3), V(q + 2, 2), V(q + 1))
            if b == 1: S_(e, "s_add_u32 s%d, s%d, %d" % (sT1, sT1, 16 * 1152), S(sT1), S(sT1))
            e.ins("buffer_store_dwordx2 %s, v%d, %s, s%d offen%s" % (vr(q, 2), oa, sr(SOUT, 4), sT1, ["", " sc1", " nt", " sc0 sc1"][OPT["ost"]]), "vstore", V(q, 2) + V(oa) + S(SOUT, 4) + S(sT1), [])
    def extra():
        lab = G.newlabel("nl")
        S_(e, "s_cmp_eq_u32 s%d, s%d" % (sTG, sKQ), S(sTG) + S(sKQ), ["scc"])
        e.raw("s_cbranch_scc0 %s" % lab); e.pos += 1
        finish_tile(give, sCOL + 2, 3, 4, sl, True)
        e.label(lab)
        e.ds = []; e.vm = []
    if OPT["fin"]: finish_tile(own, sCOL + 3, 0, 3, so, False, extra if typ == "A" else None)
    else:
        finish_tile(own, sCOL + 3, 0, 3, so, False)
        if typ == "A": extra()

def finish(G):
    e = G.e
    G.drain()
    G.stamp()
    if OPT["trace"]:
        e.raw("s_waitcnt vmcnt(0) lgkmcnt(0)")
        G.trace(22)
        e.raw("v_mov_b32 v22, s92")
        e.raw("s_mov_b64 exec, %s" % sr(sWM, 2))
        e.raw("ds_write_b32 v%d, v22 offset:%d" % (vL16, 6144 + 15 * 128 + 12))
        e.raw("s_mov_b64 exec, -1")
        e.raw("s_waitcnt lgkmcnt(0)")
        e.raw("s_barrier")
        e.raw("s_lshl2_add_u32 s%d, s%d, s%d" % (sT0, sM, sKQ))
        e.raw("s_lshl2_add_u32 s%d, s%d, s%d" % (sT0, sT0, sNQ))
        e.raw("s_lshl_b32 s%d, s%d, 11" % (sT0, sT0))
        e.raw("s_add_u32 s%d, s%d, 0x%x" % (sT0, sT0, WS_TS))
        e.raw("ds_read_b128 v[24:27], v%d offset:6144" % vL16)
        e.raw("ds_read_b128 v[28:31], v%d offset:7168" % vL16)
        e.raw("s_waitcnt lgkmcnt(0)")
        e.raw("buffer_store_dwordx4 v[24:27], v%d, %s, s%d offen" % (vL16, sr(SWS, 4), sT0))
        e.raw("buffer_store_dwordx4 v[28:31], v%d, %s, s%d offen offset:1024" % (vL16, sr(SWS, 4), sT0))
        print("ntrace", G.tag, G.misc["ntrace"], file=sys.stderr)
    if OPT["stamps"]:
        e.raw("s_waitcnt vmcnt(0) lgkmcnt(0)")
        e.raw("s_memrealtime s[62:63]")
        e.raw("s_waitcnt lgkmcnt(0)")
        e.raw("v_mov_b32 v33, s62"); e.raw("v_mov_b32 v34, s100"); e.raw("v_mov_b32 v35, 0")
        e.raw("s_lshl2_add_u32 s%d, s%d, s%d" % (sT0, sM, sKQ))
        e.raw("s_lshl2_add_u32 s%d, s%d, s%d" % (sT0, sT0, sNQ))
        e.raw("s_lshl3_add_u32 s%d, s%d, s%d" % (sT0, sT0, sW))
        e.raw("s_lshl_b32 s%d, s%d, 6" % (sT0, sT0))
        e.raw("s_add_u32 s%d, s%d, 0x%x" % (sT0, sT0, WS_TS))
        for i in range(NSTAMP):
            e.raw("v_mov_b32 v%d, s%d" % (24 + i, sTS + i))
        e.raw("s_mov_b64 exec, 1")
        for i in range(3):
            e.raw("buffer_store_dwordx4 %s, off, %s, s%d offset:%d" % (vr(24 + 4 * i, 4), sr(SWS, 4), sT0, 16 * i))
    e.raw("s_endpgm")

def schedule_polls(G, typ, stages):
    npair = 4 if typ == "A" else 5
    nP1 = 9 + 3 * (npair - 1)
    ko, hreg = korder(typ)
    if typ == "A": chk_stage = {0: nP1 - 2, 1: nP1, 2: nP1 + 3, 3: nP1 + 5, 4: nP1 + 7}
    else: chk_stage = {0: nP1 - 2, 1: nP1 - 1, 2: nP1 + 1, 3: nP1 + 4, 4: nP1 + 7}
    if OPT["vb"]:
        if typ == "A": chk_stage = {0: nP1 - 3, 1: nP1, 2: nP1 + 3, 3: nP1 + 4, 4: nP1 + 6}
        else: chk_stage = {0: nP1 - 3, 1: nP1 - 2, 2: nP1 + 1, 3: nP1 + 4, 4: nP1 + 6}
    for k in chk_stage:
        chk_stage[k] += OPT.get("ps%s%d" % (typ, k), 0)
    for lev, cs in chk_stage.items():
        tmp = vQ + 4 * (lev & 1) if cs <= nP1 else (hreg[ko[15]] if lev < 4 else 22)
        iss, chk = poll(G, SWS, sF1R, tmp, lev + 1, "flag")
        G.post_items.setdefault(("pre", cs - 1), []).append((8, iss))
        def hook(G, lev=lev, chk=chk):
            assert G.published >= min(lev, npair - 1), ("publish order", typ, lev, G.published)
            chk(G)
        G.top_hooks.setdefault(cs, []).append(hook)
        def addq(G, lev=lev): G.misc["hq"] = G.misc.get("hq", []) + hload_items(typ, lev)
        G.top_hooks.setdefault(cs, []).append(addq)
    G.post_items.setdefault(nP1 - 3, []).extend(setup_P2_addr())

def cpf_block(G):
    e = G.e
    if OPT["cpf"]:
        t = vTMP + 2
        dw_block(G, ["s_getpc_b64 s[%d:%d]" % (sT0, sT1),
                     "s_and_b32 s%d, s%d, 7" % (sCP, sM),
                     "s_lshl2_add_u32 s%d, s%d, s%d" % (sCP, sCP, sNQ),
                     "s_mul_i32 s%d, s%d, %d" % (sCP, sCP, 12 * 128),
                     "v_lshlrev_b32 v%d, 7, v0" % t,
                     "v_add_u32 v%d, s%d, v%d" % (t, sCP, t),
                     "v_min_u32 v%d, CODE_TAIL, v%d" % (t, t)] + touch_lines(12) +
                    ["global_load_lds_dword v%d, s[%d:%d]" % (t, sT0, sT1), "s_mov_b64 exec, -1"], V(t), wave=7)
        e.label("L_cpf")

def main():
    if OPT["nomfma"]:
        Em.mfma = lambda self, *a, **k: None
    G = Gen()
    prologue(G)
    e = G.e
    st = {t: plan(t) for t in "AB"}
    seq = {t: alloc_seq(t, st[t]) for t in "AB"}
    hgs = {t: build_hgs(t, st[t]) for t in "AB"}
    for it in try_alloc(G, "A", st["A"], seq["A"], OPT["n0"] - 1): it[1](G)
    prologue_b(G)
    if not OPT["phase1_only"]: nonce_store(G)
    if not OPT["cpe"]: cpf_block(G)
    if OPT["pw"] >= 0: e.wait_vm_token(G.unit_tok[(OPT["pw"] // 3, OPT["pw"] % 3)])
    for it in try_alloc(G, "A", st["A"], seq["A"], OPT["n1"] - 1): run_dma_item(G, it)
    e.wait_vm_token(max(G.unit_tok[(0, ui)] for ui in range(3)))
    e.barrier()
    G.certified = 0
    G.stamp()
    ds = deferred_setup()
    for i, it in enumerate(ds):
        G.post_items.setdefault(1 + i // 3, []).append(it)
    nw = 1
    if OPT["tw1"]:
        for pair, st0 in ((1, 2), (2, 4), (3, 7), (4, 9)):
            for piece in range(2):
                G.post_items.setdefault(st0 + piece, []).append(touch_w1_piece(pair, piece, nw % 7 + 1)); nw += 1
    G.post_items.setdefault(7, []).append(OT(cols_setup))
    if not OPT["phase1_only"]:
        if OPT["twa"]:
            for piece in range(12):
                G.post_items.setdefault(OPT["tw2"] + piece // OPT["twp"], []).append(touch_w2_pieceA(piece, nw % 7 + 1)); nw += 1
        elif OPT["tw2"]:
            for piece in range(OPT["tw2n"]):
                G.post_items.setdefault(OPT["tw2"] + piece, []).append(touch_w2_piece(piece, OPT["tw2n"], nw % 7 + 1)); nw += 1
        if OPT["tlb"]:
            for i, it in enumerate(tlb_items()): G.post_items.setdefault(OPT["tlb"] + i, []).append(it)
        iss, chk = poll(G, SDBG, 0, ACC[1] + 14, 0, "dbg")
        G.post_items.setdefault(("pre", 6), []).append((0, iss))
        G.top_hooks.setdefault(8, []).append(chk)
        G.post_items.setdefault(9, []).extend(setup_F_voffset())
    G.top_hooks.setdefault(8, []).append(lambda G: G.e.wait_vm_token(G.misc["btok"]))
    issue_hg_reads(G, hgs["A"], 2)
    emit_reads(G, 100)
    run_stages(G, "A", st["A"], seq["A"], hgs["A"], 0, 9)
    G.stamp()
    ncommon = 11
    run_stages(G, "A", st["A"], seq["A"], hgs["A"], 9, ncommon)
    assert seq["A"][:G.next_alloc] == seq["B"][:G.next_alloc] and all(st["A"][u[0]] == st["B"][u[0]] for u in seq["A"][:G.next_alloc])
    S_(e, "s_cmp_ge_u32 s%d, 2" % sNQ, S(sNQ), ["scc"])
    e.raw("s_cbranch_scc1 L_typeB"); e.pos += 1
    txt = e.text()
    for typ in "AB":
        Gx = G.fork(typ)
        npair = 4 if typ == "A" else 5
        nP1 = 9 + 3 * (npair - 1)
        if not OPT["phase1_only"]: schedule_polls(Gx, typ, st[typ])
        run_stages(Gx, typ, st[typ], seq[typ], hgs[typ], ncommon, nP1)
        Gx.stamp()
        if OPT["phase1_only"]:
            for h in Gx.top_hooks.pop(nP1, []): h(Gx)
            Gx.e.barrier()
            Gx.q = Gx.q + Gx.post_items.pop(nP1 - 1, []) + Gx.post_items.pop(nP1, [])
        else:
            run_stages(Gx, typ, st[typ], seq[typ], hgs[typ], nP1, nP1 + 9)
            Gx.stamp()
            run_stages(Gx, typ, st[typ], seq[typ], hgs[typ], nP1 + 9, nP1 + 12)
            Gx.stamp()
            final(Gx, typ, st[typ])
        finish(Gx)
        assert not Gx.top_hooks and not Gx.post_items, (Gx.top_hooks.keys(), Gx.post_items.keys())
        print(typ, Gx.e.stats, file=sys.stderr)
        if typ == "B": txt += "L_typeB:\n"
        txt += Gx.e.text()
    txt += "L_end:\n"
    txt = txt.replace("CODE_TAIL", "L_end-L_cpf")
    out = file_text(["; @launch grid=(256,1,1) block=(512,1,1) lds=%d" % LDS_BYTES], [(KNAME, txt, 256, 102, 256)])
    open(sys.argv[1], "w").write(out)

if __name__ == "__main__":
    main()
```
